```python
import torch

def _softmax(x, axis=-1):
    return torch.softmax(x, dim=axis)
def _gelu(x):
    return torch.nn.functional.gelu(x, approximate="tanh")
def _silu(x):
    return torch.nn.functional.silu(x)
def _sigmoid(x):
    return torch.sigmoid(x)
def _layernorm(x, axis=-1, eps=1e-5):
    m = x.mean(dim=axis, keepdim=True)
    v = x.var(dim=axis, keepdim=True, unbiased=False)
    return (x - m) / torch.sqrt(v + eps)
def _scatter_add(tgt, idx, src, axis=0):
    return tgt.clone().index_add_(axis, idx, src)
def _segment_sum(src, seg, n):
    out = torch.zeros((n,) + src.shape[1:], dtype=src.dtype)
    return out.index_add_(0, seg, src)
def _pad(x, pw):
    flat = tuple(v for pair in reversed(pw) for v in pair)
    return torch.nn.functional.pad(x, flat)

kernel_name = 'sequential_preLN__sliding_block__mixer_channel_mlp__prompt'

def setup_inputs():

    _w = (lambda a: (lambda t: t.to(torch.bfloat16) if t.is_floating_point() else t)(torch.as_tensor(a)))
    def _A_setup():
        B, S, D = 1, 2048, 640
        return {
            "x": _w((lambda *s: torch.randn(*s, dtype=torch.bfloat16) * 0.05)(B, S, D)),
            "wqkv": _w((lambda *s: torch.randn(*s, dtype=torch.bfloat16) * 0.05)(D, 3 * D)),
            "wo": _w((lambda *s: torch.randn(*s, dtype=torch.bfloat16) * 0.05)(D, D)),
        }
    _A_in = _A_setup()

    def _B_setup():
        B, S, D, F = 1, 2048, 640, 1536
        return {
            "x": _w((lambda *s: torch.randn(*s, dtype=torch.bfloat16) * 0.05)(B, S, D)),
            "w1": _w((lambda *s: torch.randn(*s, dtype=torch.bfloat16) * 3.2)(D, F) * (D ** -0.5)),
            "b1": _w((lambda *s: torch.randn(*s, dtype=torch.bfloat16) * 1.6)(F)),
            "w2": _w((lambda *s: torch.randn(*s, dtype=torch.bfloat16) * 0.2)(F, D) * (F ** -0.5)),
            "b2": _w((lambda *s: torch.randn(*s, dtype=torch.bfloat16) * 0.4)(D)),
        }
    _B_in = _B_setup()

    return {
        "A_x": _A_in["x"],
        "A_wqkv": _A_in["wqkv"],
        "A_wo": _A_in["wo"],
        "B_x": _B_in["x"],
        "B_w1": _B_in["w1"],
        "B_b1": _B_in["b1"],
        "B_w2": _B_in["w2"],
        "B_b2": _B_in["b2"],
    }

def reference(A_x, A_wqkv, A_wo, B_x, B_w1, B_b1, B_w2, B_b2):
    def _A_ref(x, wqkv, wo):
        B, S, D = x.shape
        H = 32; Dh = D // H; W = 256
        qkv = (lambda x, *d: x.permute(*d))((x @ wqkv).reshape(B, S, 3, H, Dh), 2, 0, 3, 1, 4)
        q, k, v = qkv[0], qkv[1], qkv[2]
        scores = torch.einsum("bhqd,bhkd->bhqk", q, k) * (Dh ** -0.5)
        idx = torch.arange(S)
        mask = (idx[:, None] - idx[None, :] >= 0) & (idx[:, None] - idx[None, :] < W)
        scores = torch.where(mask[None, None], scores, -1e9)
        p = _softmax(scores, axis=-1)
        o = torch.einsum("bhqk,bhkd->bhqd", p, v)
        return (lambda x, *d: x.permute(*d))(o, 0, 2, 1, 3).reshape(B, S, D) @ wo

    def _B_ref(x, w1, b1, w2, b2):
        y = _layernorm(x, axis=-1)
        h = _gelu(torch.einsum("bsd,df->bsf", y, w1) + b1)
        return torch.einsum("bsf,fd->bsd", h, w2) + b2

    x = A_x
    h = x + _A_ref(_layernorm(x, axis=-1), A_wqkv, A_wo)
    h2 = h + _B_ref(_layernorm(h, axis=-1), B_w1, B_b1, B_w2, B_b2)
    return h2
```

```python
import re

_REG = re.compile(r'^(-|abs\()?([vsa])(\d+)\)?$')
_RNG = re.compile(r'^(-|abs\()?([vsa])\[(\d+):(\d+)\]\)?$')

def regs_of(op):
    op = op.strip()
    if op in ('vcc', 'vcc_lo', 'vcc_hi'):
        return {('s', 'vcc')}
    if op in ('exec', 'exec_lo', 'exec_hi'):
        return {('s', 'exec')}
    if op == 'm0':
        return {('s', 'm0')}
    m = _REG.match(op)
    if m:
        return {(m.group(2), int(m.group(3)))}
    m = _RNG.match(op)
    if m:
        return {(m.group(2), i) for i in range(int(m.group(3)), int(m.group(4)) + 1)}
    return set()

TRANS = ('v_exp_f32', 'v_log_f32', 'v_rcp_f32', 'v_rsq_f32', 'v_sqrt_f32', 'v_sin_f32', 'v_cos_f32', 'v_rcp_iflag_f32')

class Ins:
    __slots__ = ('text', 'mn', 'ops', 'mods', 'kind', 'dst', 'src', 'srcC', 'passes', 'ws', 'noflush')
    def __init__(self, text):
        self.text = text
        t = text.split(';')[0].strip()
        parts = t.split(None, 1)
        self.mn = parts[0]
        rest = parts[1] if len(parts) > 1 else ''
        ops, cur, depth = [], '', 0
        for ch in rest:
            if ch in '[(': depth += 1
            if ch in '])': depth -= 1
            if ch == ',' and depth == 0:
                ops.append(cur.strip()); cur = ''
            else:
                cur += ch
        if cur.strip(): ops.append(cur.strip())
        self.mods = ''
        if ops:
            last = ops[-1].split(None, 1)
            ops[-1] = last[0]
            if len(last) > 1: self.mods = last[1]
        self.ops = ops
        self.ws = 1
        self.passes = 0
        self.srcC = set()
        self.noflush = False
        self.classify()

    def classify(self):
        mn, ops = self.mn, self.ops
        R = [regs_of(o) for o in ops]
        allr = set().union(*R) if R else set()
        self.dst, self.src = set(), set()
        if mn.startswith('v_mfma'):
            self.kind = 'mfma'
            self.passes = 8 if '32x32' in mn else 4
            self.dst = R[0]; self.src = R[1] | R[2] | R[3]; self.srcC = R[3]
        elif mn.startswith('v_cmpx'):
            self.kind = 'valu'; self.dst = R[0] | {('s', 'exec')}; self.src = set().union(*R[1:])
        elif mn.startswith('v_cmp'):
            self.kind = 'valu'; self.dst = R[0]; self.src = set().union(*R[1:])
        elif mn.startswith('v_readfirstlane') or mn.startswith('v_readlane'):
            self.kind = 'valu'; self.dst = R[0]; self.src = set().union(*R[1:])
        elif mn.startswith('v_permlane'):
            self.kind = 'valu'; self.dst = allr; self.src = allr
        elif mn.startswith(('v_fmac', 'v_dot2c', 'v_pk_fmac', 'v_writelane')):
            self.kind = 'valu'; self.dst = R[0]; self.src = allr
        elif mn.startswith(('v_add_co', 'v_sub_co', 'v_addc_co', 'v_subb_co', 'v_subrev_co', 'v_div_scale', 'v_mad_u64_u32')):
            self.kind = 'valu'; self.dst = R[0] | R[1]; self.src = set().union(*R[2:])
        elif mn.startswith('v_'):
            self.kind = 'valu'; self.dst = R[0]; self.src = set().union(*R[1:]) if len(R) > 1 else set()
            if '_dpp' in mn or 'row_' in self.mods or 'quad_perm' in self.mods:
                self.kind = 'valu'
        elif mn.startswith(('ds_read', 'ds_bpermute', 'ds_permute', 'ds_swizzle')) or (mn.startswith('ds_') and '_rtn' in mn):
            self.kind = 'ds'; self.dst = R[0]; self.src = set().union(*R[1:])
        elif mn.startswith('ds_'):
            self.kind = 'ds'; self.src = allr
        elif mn.startswith(('buffer_load', 'global_load')):
            self.kind = 'vmem'
            if 'lds' in self.mods.split() or 'lds' in mn:
                self.src = allr | {('s', 'm0')}
            else:
                self.dst = R[0]; self.src = set().union(*R[1:])
        elif mn.startswith(('buffer_store', 'global_store')):
            self.kind = 'vmem'; self.src = allr
        elif mn.startswith(('buffer_atomic', 'global_atomic')):
            self.kind = 'vmem'; self.src = allr
            if 'sc0' in self.mods.split(): self.dst = R[0]
        elif mn.startswith(('buffer_wbl2', 'buffer_inv')):
            self.kind = 'vmem'
        elif mn == 's_nop':
            self.kind = 'nop'; self.ws = int(ops[0], 0) + 1
        elif mn.startswith(('s_branch', 's_cbranch')):
            self.kind = 'branch'
        elif mn.startswith(('s_waitcnt', 's_barrier', 's_setprio', 's_sleep', 's_endpgm', 's_cmp', 's_bitcmp')):
            self.kind = 'salu'; self.src = allr
        elif mn.startswith(('s_load', 's_buffer_load', 's_memtime', 's_memrealtime')):
            self.kind = 'smem'; self.dst = R[0]; self.src = set().union(*R[1:]) if len(R) > 1 else set()
        elif mn.startswith('s_'):
            self.kind = 'salu'; self.dst = R[0] if R else set(); self.src = set().union(*R[1:]) if len(R) > 1 else set()
            if 'saveexec' in mn: self.dst = self.dst | {('s', 'exec')}
        else:
            raise ValueError('unknown instruction: ' + self.text)

    @property
    def is_trans(self): return self.mn.split('_e')[0] in TRANS or self.mn in TRANS
    @property
    def is_dpp(self): return '_dpp' in self.mn or 'row_' in self.mods or 'quad_perm' in self.mods
    @property
    def is_wide_store(self):
        return self.mn.startswith(('buffer_store_dwordx3', 'buffer_store_dwordx4', 'global_store_dwordx3', 'global_store_dwordx4'))


class Asm:
    def __init__(self):
        self.items = []
        self._lab = 0
    def __call__(self, text):
        for line in text.split('\n'):
            line = line.strip()
            if not line or line.startswith(';'):
                continue
            self.items.append(('i', Ins(line)))
        return self
    def label(self, name):
        self.items.append(('l', name))
    def newlabel(self, base='L'):
        self._lab += 1
        return f'{base}_{self._lab}'
    def raw(self, text):
        self.items.append(('t', text))
    def comment(self, text):
        self.items.append(('t', '    ; ' + text))

    def finish(self):
        out = []
        hist = []
        pos = 0
        MAXLOOK = 14
        def need(ins):
            extra = 0
            for (p, ppos) in hist:
                dist = pos - ppos - 1 + 0
                dist = pos - (ppos + 1)
                req = 0
                pv = {r for r in p.dst if r[0] in 'va'}
                ps = {r for r in p.dst if r[0] == 's'}
                if p.kind == 'valu':
                    if ins.kind == 'mfma' and (pv & ins.src): req = max(req, 2)
                    if ins.mn.startswith('v_permlane') and (pv & ins.src): req = max(req, 2)
                    if ins.mn.startswith(('v_readfirstlane', 'v_readlane')) and (pv & ins.src): req = max(req, 1)
                    if ins.is_dpp and (pv & ins.src): req = max(req, 2)
                    if p.is_trans and ins.kind in ('valu', 'mfma', 'ds', 'vmem') and (pv & ins.src): req = max(req, 1)
                    if ps:
                        if ins.kind == 'valu' and (ps & ins.src): req = max(req, 2)
                        if ins.mn.startswith(('v_readlane', 'v_writelane')) and (ps & ins.src): req = max(req, 4)
                        if ins.kind == 'vmem' and (ps & ins.src): req = max(req, 5)
                        if ins.kind in ('salu', 'smem', 'branch') and (ps & (ins.src | ({('s', 'vcc')} if 'vcc' in ins.mn else set()))): req = max(req, 3)
                        if ('s', 'exec') in ps:
                            if ins.kind == 'mfma': req = max(req, 4)
                            if ins.is_dpp: req = max(req, 5)
                            if ins.mn.startswith(('v_readlane', 'v_readfirstlane', 'v_permlane', 'v_writelane')): req = max(req, 4)
                if p.kind == 'mfma':
                    big = 8 if p.passes == 4 else 12
                    ovl = 6 if p.passes == 4 else 10
                    if ins.kind == 'mfma':
                        if p.dst & (ins.src - ins.srcC): req = max(req, big)
                        ab = regs_of(ins.ops[1]) | regs_of(ins.ops[2])
                        if p.dst & ab: req = max(req, big)
                        if p.dst & ins.srcC:
                            if not (p.dst == ins.srcC and p.passes == ins.passes): req = max(req, ovl)
                        if (p.dst & ins.dst) and not (p.dst & ins.srcC): req = max(req, ovl)
                    elif ins.kind in ('valu', 'ds', 'vmem'):
                        if p.dst & (ins.src | ins.dst): req = max(req, big)
                        if ins.kind == 'valu' and (p.srcC & ins.dst): req = max(req, 3 if p.passes == 4 else 7)
                if p.is_wide_store:
                    data = regs_of(p.ops[0]) if p.mn.startswith('buffer') else regs_of(p.ops[1])
                    if data & ins.dst: req = max(req, 2)
                if p.kind == 'salu' and ('s', 'm0') in p.dst:
                    if ('s', 'm0') in ins.src: req = max(req, 1)
                if req > dist: extra = max(extra, req - dist)
            return extra
        def pending():
            extra = 0
            for (p, ppos) in hist:
                dist = pos - (ppos + 1)
                req = 0
                if p.kind == 'valu':
                    req = 2
                    if any(r[0] == 's' for r in p.dst): req = 5
                if p.kind == 'mfma': req = 8 if p.passes == 4 else 12
                if p.is_wide_store: req = 2
                if p.kind == 'salu' and ('s', 'm0') in p.dst: req = 1
                if req > dist: extra = max(extra, req - dist)
            return extra
        def emit_nops(n):
            nonlocal pos
            while n > 0:
                k = min(n, 8)
                out.append(f'    s_nop {k - 1}')
                pos += k
                n -= k
        for kind, it in self.items:
            if kind == 't':
                out.append(it)
            elif kind == 'l':
                emit_nops(pending())
                hist = []
                out.append(f'{it}:')
            else:
                ins = it
                if ins.kind == 'branch':
                    emit_nops(max(pending(), need(ins)))
                else:
                    emit_nops(need(ins))
                out.append('    ' + ins.text)
                hist.append((ins, pos))
                pos += ins.ws
                hist = [(p, pp) for (p, pp) in hist if pos - pp <= MAXLOOK]
        return '\n'.join(out) + '\n'


class RegAlloc:
    def __init__(self, n, start=0, cls='v'):
        self.n = n; self.cls = cls
        self.free = [True] * n
        for i in range(start): self.free[i] = False
        self.hi = start
    def alloc(self, cnt=1, align=1):
        if cnt >= 2 and align == 1: align = 2
        i = 0
        while i + cnt <= self.n:
            if i % align == 0 and all(self.free[i:i + cnt]):
                for k in range(i, i + cnt): self.free[k] = False
                self.hi = max(self.hi, i + cnt)
                return i
            i += 1
        raise RuntimeError(f'out of {self.cls} registers (need {cnt})')
    def release(self, i, cnt=1):
        for k in range(i, i + cnt):
            assert not self.free[k]
            self.free[k] = True

def vr(i, n=1): return f'v{i}' if n == 1 else f'v[{i}:{i + n - 1}]'
def sr(i, n=1): return f's{i}' if n == 1 else f's[{i}:{i + n - 1}]'
```

```python
import sys
from asmgen import Asm, RegAlloc, vr, sr

NAME = "sequential_preLN__sliding_block__mixer_channel_mlp__prompt"

HEADB = 81920
WS_FL = 0x0
WS_QK = 0x10000
WS_VF = 0x510000
WS_OF = 0x790000
WS_HF = 0xA10000
WS_GF = 0xC90000
WS_WT3 = 0x1290000
WS_WT5 = 0x1360000
WS_ST2 = 0x1540000
FL1, FL2, FL3, FL4, FLX, FLE = 0x0, 0x1000, 0x2000, 0x3000, 0x4000, 0x5000
WS_DBG = 0x1560000
WS_SIZE = 0x1660000

S_X, S_WQKV, S_WO, S_W1, S_W2, S_WS, S_OUT, S_B1, S_B2 = 4, 8, 12, 16, 20, 24, 28, 32, 36
S_WAVE, S_TEAM, S_MEM, S_RB, S_CB, S_TAG, S_LW = 40, 41, 42, 43, 44, 45, 46
S_T0, S_T1, S_T2, S_T3, S_T4, S_T5, S_T6, S_T7 = 48, 49, 50, 51, 52, 53, 54, 55
S_SPIN = 56
S_ONES = 57
S_MSK = 60
S_SAVE = 70

QSCALE = (20 ** -0.5) * 1.4426950408889634

import struct
def f2u(f): return struct.unpack('<I', struct.pack('<f', f))[0]

def scsel(a, dst, x, y):
    def lit(v): return isinstance(v, int) and not (-16 <= v <= 64)
    if lit(x) and lit(y):
        a(f's_mov_b32 {dst}, {y}')
        a(f's_cselect_b32 {dst}, {x}, {dst}')
    else:
        a(f's_cselect_b32 {dst}, {x}, {y}')

class Opt:
    stop_after = 5
    safe = True
    dbg = False
    prof = False
    nostats = False
    nort = False
    nomfma = False
    nodma = False

def dump(a, regs, slot, wg=0, tmp=250):
    lab = a.newlabel('L_dump')
    a(f's_cmp_lg_u32 s2, {wg}')
    a(f's_cbranch_scc1 {lab}')
    a(f's_lshl_b32 s90, {sr(S_WAVE)}, 14')
    a(f's_add_u32 s90, s90, {WS_DBG + slot * 8 * 16384}')
    a(f'v_lshlrev_b32 v{tmp}, 2, v0')
    for i, r in enumerate(regs):
        a(f'buffer_store_dword v{r}, v{tmp}, {sr(S_WS, 4)}, s90 offen offset:{(i % 16) * 256}')
        if i % 16 == 15: a('s_add_u32 s90, s90, 4096')
    a('s_waitcnt vmcnt(0)')
    a.label(lab)

STAMPS = []
def stamp(a, o, idx):
    if not o.prof: return
    assert idx < 10
    a(f's_memtime s[{80 + 2 * idx}:{81 + 2 * idx}]')

def stamps_out(a, o):
    if not o.prof: return
    a('s_waitcnt lgkmcnt(0)')
    a(f's_lshl_b32 s73, s2, 3')
    a(f's_add_u32 s73, s73, {sr(S_WAVE)}')
    a(f's_lshl_b32 s73, s73, 6')
    a(f's_add_u32 s73, s73, {WS_DBG + 0x80000}')
    a('v_mov_b32 v2, 0')
    a('s_mov_b64 exec, 1')
    for i in range(10):
        a(f'v_mov_b32 v1, s{80 + 2 * i}')
        a(f'buffer_store_dword v1, v2, {sr(S_WS, 4)}, s73 offen offset:{4 * i}')
    a('s_mov_b64 exec, -1')

def prologue(a, o):
    a.comment('---- prologue ----')
    a('s_cmp_ge_u32 s2, 256')
    a('s_cbranch_scc1 L_exit')
    stamp(a, o, 0)
    a('s_load_dwordx16 s[48:63], s[0:1], 0')
    a('s_load_dwordx4 s[64:67], s[0:1], 64')
    a('s_load_dwordx2 s[68:69], s[0:1], 80')
    a('v_lshrrev_b32 v1, 6, v0')
    a('v_and_b32 v0, 63, v0')
    a(f'v_readfirstlane_b32 {sr(S_WAVE)}, v1')
    a(f's_and_b32 {sr(S_TEAM)}, s2, 7')
    a(f's_lshr_b32 {sr(S_MEM)}, s2, 3')
    a('s_waitcnt lgkmcnt(0)')
    a(f's_load_dword s72, s[68:69], {WS_FL + FLE}')
    def srd(d, p, size):
        a(f's_mov_b32 {sr(d)}, {sr(p)}')
        a(f's_and_b32 {sr(d + 1)}, {sr(p + 1)}, 0xffff')
        a(f's_mov_b32 {sr(d + 2)}, {size}')
        a(f's_mov_b32 {sr(d + 3)}, 0x00020000')
    srd(S_X, 48, 2048 * 640 * 2)
    srd(S_WQKV, 50, 640 * 1920 * 2)
    srd(S_WO, 52, 640 * 640 * 2)
    srd(S_W1, 56, 640 * 1536 * 2)
    srd(S_B1, 58, 1536 * 2)
    srd(S_W2, 60, 1536 * 640 * 2)
    srd(S_B2, 62, 640 * 2)
    srd(S_OUT, 64, 2048 * 640 * 2)
    srd(S_WS, 68, WS_SIZE)
    a(f's_mov_b32 {sr(S_ONES)}, 0x3f803f80')
    a(f's_cmp_ge_u32 {sr(S_MEM)}, 15')
    a(f's_cselect_b32 {sr(S_T0)}, 1, 0')
    a(f's_mul_i32 {sr(S_T1)}, {sr(S_T0)}, 15')
    a(f's_sub_u32 {sr(S_CB)}, {sr(S_MEM)}, {sr(S_T1)}')
    a(f's_lshl_b32 {sr(S_RB)}, {sr(S_TEAM)}, 1')
    a(f's_add_u32 {sr(S_RB)}, {sr(S_RB)}, {sr(S_T0)}')
    a(f's_cmp_ge_u32 {sr(S_MEM)}, 30')
    lab = a.newlabel('L_nospare')
    a(f's_cbranch_scc0 {lab}')
    a(f's_sub_u32 {sr(S_T0)}, {sr(S_MEM)}, 30')
    a(f's_lshl_b32 {sr(S_RB)}, {sr(S_TEAM)}, 1')
    a(f's_add_u32 {sr(S_RB)}, {sr(S_RB)}, {sr(S_T0)}')
    a(f's_mov_b32 {sr(S_CB)}, 15')
    a.label(lab)
    a(f's_and_b32 {sr(S_LW)}, {sr(S_WAVE)}, 3')

S1_SLOT = 32768
S1_STATS = 131072
S1_RT = 132096

def s1_loader(a, o):
    a.comment('---- S1 loader ----')
    V = RegAlloc(256, 1)
    vA = [V.alloc() for _ in range(2)]
    vW = [V.alloc() for _ in range(2)]
    t0, t1, t2, t3 = [V.alloc() for _ in range(4)]
    lane = 'v0'
    a(f'v_lshrrev_b32 {vr(t0)}, 3, {lane}')
    a(f'v_mul_u32_u24 {vr(t0)}, 0x500, {vr(t0)}')
    a(f'v_lshrrev_b32 {vr(t1)}, 4, {lane}')
    a(f'v_and_b32 {vr(t2)}, 7, {lane}')
    for par in range(2):
        a(f'v_add_u32 {vr(t3)}, {4 * par}, {vr(t1)}')
        a(f'v_xor_b32 {vr(t3)}, {vr(t2)}, {vr(t3)}')
        a(f'v_lshl_add_u32 {vr(vA[par])}, {vr(t3)}, 4, {vr(t0)}')
    a(f'v_mul_u32_u24 {vr(t0)}, 0xf00, {vr(t1)}')
    a(f'v_and_b32 {vr(t2)}, 15, {lane}')
    for v in range(2):
        a(f'v_or_b32 {vr(t3)}, {4 * v}, {vr(t1)}')
        a(f'v_lshlrev_b32 {vr(t3)}, 1, {vr(t3)}')
        a(f'v_xor_b32 {vr(t3)}, {vr(t2)}, {vr(t3)}')
        a(f'v_lshl_add_u32 {vr(vW[v])}, {vr(t3)}, 4, {vr(t0)}')
    sA, sW, sLA, sLW = S_T0, S_T1, S_T2, S_T3
    a(f's_lshl_b32 {sr(sA)}, {sr(S_RB)}, 7')
    a(f's_lshl_b32 {sr(S_T4)}, {sr(S_LW)}, 5')
    a(f's_add_u32 {sr(sA)}, {sr(sA)}, {sr(S_T4)}')
    a(f's_mul_i32 {sr(sA)}, {sr(sA)}, 1280')
    a(f's_mul_i32 {sr(sW)}, {sr(S_LW)}, {16 * 3840}')
    a(f's_lshl_b32 {sr(S_T4)}, {sr(S_CB)}, 8')
    a(f's_add_u32 {sr(sW)}, {sr(sW)}, {sr(S_T4)}')
    a(f's_lshl_b32 {sr(sLA)}, {sr(S_LW)}, 12')
    a(f's_add_u32 {sr(sLW)}, {sr(sLA)}, 16384')

    def issue_chunk(c):
        slot = (c % 4) * S1_SLOT
        for i in range(4):
            a(f's_add_u32 m0, {sr(sLA)}, {slot + i * 1024}')
            a(f's_add_u32 {sr(S_T4)}, {sr(sA)}, {i * 8 * 1280 + c * 128}')
            a(f'buffer_load_dwordx4 {vr(vA[i & 1])}, {sr(S_X, 4)}, {sr(S_T4)} offen lds')
        for i in range(4):
            a(f's_add_u32 m0, {sr(sLW)}, {slot + i * 1024}')
            a(f's_add_u32 {sr(S_T4)}, {sr(sW)}, {(64 * c + 4 * i) * 3840}')
            a(f'buffer_load_dwordx4 {vr(vW[i >> 1])}, {sr(S_WQKV, 4)}, {sr(S_T4)} offen lds')

    stamp(a, o, 1)
    for c in range(2):
        issue_chunk(c)
    stamp(a, o, 2)


    fr = V.alloc(16, 4)
    ones = V.alloc()
    acc_s = [V.alloc() for _ in range(2)]
    acc_q = [V.alloc() for _ in range(2)]
    aaddr = [V.alloc() for _ in range(2)]
    a(f'v_mov_b32 {vr(ones)}, {sr(S_ONES)}')
    for m in range(2):
        a(f'v_mov_b32 {vr(acc_s[m])}, 0')
        a(f'v_mov_b32 {vr(acc_q[m])}, 0')
    a(f'v_and_b32 {vr(t0)}, 15, {lane}')
    a(f'v_lshrrev_b32 {vr(t1)}, 4, {lane}')
    a(f'v_bfe_u32 {vr(t2)}, {lane}, 1, 3')
    a(f'v_lshlrev_b32 {vr(t3)}, 7, {vr(t0)}')
    a(f'v_mov_b32 {vr(fr)}, {sr(sLA)}')
    a(f'v_add_u32 {vr(t3)}, {vr(t3)}, {vr(fr)}')
    for ks in range(2):
        a(f'v_add_u32 {vr(fr)}, {4 * ks}, {vr(t1)}')
        a(f'v_xor_b32 {vr(fr)}, {vr(fr)}, {vr(t2)}')
        a(f'v_lshl_add_u32 {vr(aaddr[ks])}, {vr(fr)}, 4, {vr(t3)}')
    aaddr_hi = [V.alloc() for _ in range(2)]
    for ks in range(2):
        a(f'v_add_u32 {vr(aaddr_hi[ks])}, 0x10000, {vr(aaddr[ks])}')

    q = []
    for c in range(2): q += [('c', c)] * 8
    def wait_for(tag):
        idx = max(i for i, t in enumerate(q) if t == tag)
        n = len(q) - 1 - idx
        a(f's_waitcnt vmcnt({n})')
        del q[:idx + 1]
    for c in range(10):
        wait_for(('c', c))
        a('s_barrier')
        if c in (0, 1, 3, 5, 9): stamp(a, o, {0: 3, 1: 4, 3: 5, 5: 6, 9: 7}[c])
        slot = c % 4
        ad = aaddr if slot < 2 else aaddr_hi
        off = (slot % 2) * S1_SLOT
        for m in range(2):
            for ks in range(2):
                a(f'ds_read_b128 {vr(fr + (m * 2 + ks) * 4, 4)}, {vr(ad[ks])} offset:{off + m * 2048}')
        if c == 0:
            issue_chunk(2); q += [('c', 2)] * 8
            issue_chunk(3); q += [('c', 3)] * 8
            if not o.nort:
                rt_setup(a, V)
                rt = retile_issue(a, V); q += [('rt', 0)] * 4
        if 1 <= c <= 6:
            issue_chunk(c + 3); q += [('c', c + 3)] * 8
        if c == 2:
            pass
        a('s_waitcnt lgkmcnt(0)')
        for m in range(2 if not o.nostats else 0):
            for ks in range(2):
                for r in range(4):
                    x = vr(fr + (m * 2 + ks) * 4 + r)
                    a(f'v_dot2_f32_bf16 {vr(acc_s[m])}, {x}, {vr(ones)}, {vr(acc_s[m])}')
                    a(f'v_dot2_f32_bf16 {vr(acc_q[m])}, {x}, {x}, {vr(acc_q[m])}')
        if c == 4 and not o.nort:
            assert not any(t[0] == 'rt' for t in q)
            n = retile_process(a, V, rt, o)
            q += [('rts', 0)] * n
    for m in range(2):
        for acc in (acc_s[m], acc_q[m]):
            a(f'v_mov_b32 {vr(t0)}, {vr(acc)}')
            a(f'v_permlane32_swap_b32 {vr(t0)}, {vr(acc)}')
            a(f'v_add_f32 {vr(acc)}, {vr(acc)}, {vr(t0)}')
            a(f'v_mov_b32 {vr(t0)}, {vr(acc)}')
            a(f'v_permlane16_swap_b32 {vr(t0)}, {vr(acc)}')
            a(f'v_add_f32 {vr(acc)}, {vr(acc)}, {vr(t0)}')
        ln_finish(a, acc_s[m], acc_q[m], t0, t1, t2)
    if o.dbg:
        dump(a, [acc_s[0], acc_q[0], acc_s[1], acc_q[1]], 2)
    a(f'v_and_b32 {vr(t0)}, 15, {lane}')
    a(f's_lshl_b32 {sr(S_T4)}, {sr(S_LW)}, 7')
    a(f's_add_u32 {sr(S_T4)}, {sr(S_T4)}, {S1_STATS}')
    a(f'v_lshl_add_u32 {vr(t0)}, {vr(t0)}, 2, {sr(S_T4)}')
    for m in range(2):
        a(f'ds_write_b32 {vr(t0)}, {vr(acc_q[m])} offset:{m * 64}')
        a(f'ds_write_b32 {vr(t0)}, {vr(acc_s[m])} offset:{512 + m * 64}')
    a('s_waitcnt lgkmcnt(0)')
    a('s_barrier')
    stamp(a, o, 8)
    a('s_waitcnt vmcnt(0)')
    a('s_barrier')
    stamp(a, o, 9)

def ln_finish(a, vs, vq, t0, t1, t2):
    inv = f2u(1.0 / 640.0)
    a(f'v_mul_f32 {vr(vs)}, {inv:#x}, {vr(vs)}')
    a(f'v_mul_f32 {vr(t0)}, {vr(vs)}, {vr(vs)}')
    a(f'v_mov_b32 {vr(t1)}, {inv:#x}')
    a(f'v_fma_f32 {vr(vq)}, {vr(vq)}, {vr(t1)}, -{vr(t0)}')
    a(f'v_max_f32 {vr(vq)}, 0, {vr(vq)}')
    a(f'v_add_f32 {vr(vq)}, {f2u(1e-5):#x}, {vr(vq)}')
    a(f'v_rsq_f32 {vr(vq)}, {vr(vq)}')
    a(f'v_mul_f32 {vr(vs)}, {vr(vs)}, {vr(vq)}')
    a(f'v_sub_f32 {vr(vs)}, 0, {vr(vs)}')

S_RJ, S_RS, S_RC = 58, 59, 47
def rt_setup(a, V):
    a(f's_lshl_b32 {sr(S_RJ)}, s2, 2')
    a(f's_add_u32 {sr(S_RJ)}, {sr(S_RJ)}, {sr(S_LW)}')
    a(f's_mul_i32 {sr(S_RS)}, {sr(S_RJ)}, 6554')
    a(f's_lshr_b32 {sr(S_RS)}, {sr(S_RS)}, 16')
    a(f's_mul_i32 {sr(S_T4)}, {sr(S_RS)}, 10')
    a(f's_sub_u32 {sr(S_RC)}, {sr(S_RJ)}, {sr(S_T4)}')

def retile_issue(a, V):
    vo = V.alloc()
    t = V.alloc()
    a(f'v_lshrrev_b32 {vr(t)}, 3, v0')
    a(f'v_mul_u32_u24 {vr(t)}, 0x500, {vr(t)}')
    a(f'v_and_b32 {vr(vo)}, 7, v0')
    a(f'v_lshl_add_u32 {vr(vo)}, {vr(vo)}, 4, {vr(t)}')
    a(f's_cmp_lt_u32 {sr(S_RS)}, 20')
    for k in range(3):
        a(f's_cselect_b32 s{76 + k}, {sr(S_WO + k)}, {sr(S_W2 + k)}')
    a('s_mov_b32 s79, 0x00020000')
    a(f's_cselect_b32 {sr(S_T4)}, 0, 20')
    a(f's_sub_u32 {sr(S_T4)}, {sr(S_RS)}, {sr(S_T4)}')
    a(f's_mul_i32 {sr(S_T4)}, {sr(S_T4)}, {32 * 1280}')
    a(f's_lshl_b32 {sr(S_T5)}, {sr(S_RC)}, 7')
    a(f's_add_u32 {sr(S_T4)}, {sr(S_T4)}, {sr(S_T5)}')
    a(f's_lshl_b32 {sr(S_T5)}, {sr(S_LW)}, 12')
    for i in range(4):
        a(f's_add_u32 m0, {sr(S_T5)}, {S1_RT + i * 1024}')
        a(f's_add_u32 {sr(S_T6)}, {sr(S_T4)}, {i * 8 * 1280}')
        a(f'buffer_load_dwordx4 {vr(vo)}, s[76:79], {sr(S_T6)} offen lds')
    V.release(t)
    return vo

def retile_process(a, V, vo, o):
    t0, t1, t2, ad = [V.alloc() for _ in range(4)]
    d = V.alloc(16, 4)
    a(f's_cmp_lt_u32 {sr(S_RS)}, 20')
    a(f's_cselect_b32 {sr(S_T4)}, 3, 2')
    scsel(a, sr(S_T5), 4 * 128, 16 * 128)
    a(f'v_lshrrev_b32 {vr(t0)}, 4, v0')
    a(f'v_lshlrev_b32 {vr(t0)}, {sr(S_T4)}, {vr(t0)}')
    a(f'v_bfe_u32 {vr(t1)}, v0, 2, 2')
    a(f'v_add_u32 {vr(t0)}, {vr(t0)}, {vr(t1)}')
    a(f'v_lshlrev_b32 {vr(t0)}, 7, {vr(t0)}')
    a(f'v_and_b32 {vr(t1)}, 3, v0')
    a(f'v_lshl_add_u32 {vr(t0)}, {vr(t1)}, 3, {vr(t0)}')
    a(f's_lshl_b32 {sr(S_T6)}, {sr(S_LW)}, 12')
    a(f's_add_u32 {sr(S_T6)}, {sr(S_T6)}, {S1_RT}')
    a(f'v_add_u32 {vr(ad)}, {sr(S_T6)}, {vr(t0)}')
    a(f'v_add_u32 {vr(t2)}, {sr(S_T5)}, {vr(ad)}')
    for jj in range(4):
        a(f'ds_read_b64_tr_b16 {vr(d + 4 * jj, 2)}, {vr(ad)} offset:{jj * 32}')
        a(f'ds_read_b64_tr_b16 {vr(d + 4 * jj + 2, 2)}, {vr(t2)} offset:{jj * 32}')
    a(f'v_lshlrev_b32 {vr(t0)}, 4, v0')
    a(f's_cmp_lt_u32 {sr(S_RS)}, 20')
    a(f's_cselect_b32 {sr(S_T4)}, 20, 48')
    a(f's_cselect_b32 {sr(S_T5)}, 0, 20')
    scsel(a, sr(S_T6), WS_WT3, WS_WT5)
    a(f's_sub_u32 {sr(S_T5)}, {sr(S_RS)}, {sr(S_T5)}')
    a(f's_cmp_ge_u32 {sr(S_RJ)}, 680')
    a(f's_cselect_b32 {sr(S_T6)}, 0x7f000000, {sr(S_T6)}')
    a('s_waitcnt lgkmcnt(0)')
    for jj in range(4):
        a(f's_lshl_b32 {sr(S_T7)}, {sr(S_RC)}, 2')
        a(f's_add_u32 {sr(S_T7)}, {sr(S_T7)}, {jj}')
        a(f's_mul_i32 s73, {sr(S_T7)}, 205')
        a(f's_lshr_b32 s73, s73, 10')
        a(f's_mul_i32 s74, s73, 5')
        a(f's_sub_u32 s74, {sr(S_T7)}, s74')
        a(f's_mul_i32 s73, s73, {sr(S_T4)}')
        a(f's_add_u32 s73, s73, {sr(S_T5)}')
        a(f's_mul_i32 s73, s73, 5')
        a(f's_add_u32 s73, s73, s74')
        a(f's_lshl_b32 s73, s73, 10')
        a(f's_add_u32 s73, s73, {sr(S_T6)}')
        a(f'buffer_store_dwordx4 {vr(d + 4 * jj, 4)}, {vr(t0)}, {sr(S_WS, 4)}, s73 offen sc1')
    for r in (t0, t1, t2, ad): V.release(r)
    V.release(d, 16)
    return 4

def s1_spare_loader(a, o):
    V = RegAlloc(256, 1)
    rt_setup(a, V)
    rt = retile_issue(a, V)
    a('s_waitcnt vmcnt(0)')
    retile_process(a, V, rt, o)
    a('s_waitcnt vmcnt(0)')
    a('s_barrier')

def s1_compute(a, o, vtype):
    a.comment(f'---- S1 compute (vtype={vtype}) ----')
    V = RegAlloc(256, 1)
    acc = V.alloc(64, 4)
    cs = V.alloc(16, 4)
    ones = V.alloc(4, 4)
    fX = [V.alloc(16, 4) for _ in range(2)]
    fW = [V.alloc(16, 4) for _ in range(2)]
    aad = [[V.alloc() for _ in range(2)] for _ in range(2)]
    wad = [[V.alloc() for _ in range(4)] for _ in range(2)]
    t0, t1, t2, t3, t4 = [V.alloc() for _ in range(5)]
    lane = 'v0'
    swm, swn = S_T0, S_T1
    a(f's_lshr_b32 {sr(swm)}, {sr(S_WAVE)}, 1')
    a(f's_and_b32 {sr(swn)}, {sr(S_WAVE)}, 1')
    a(f'v_and_b32 {vr(t0)}, 15, {lane}')
    a(f'v_lshrrev_b32 {vr(t1)}, 4, {lane}')
    a(f'v_bfe_u32 {vr(t2)}, {lane}, 1, 3')
    a(f's_lshl_b32 {sr(S_T2)}, {sr(swm)}, 13')
    a(f'v_lshl_add_u32 {vr(t3)}, {vr(t0)}, 7, {sr(S_T2)}')
    for ks in range(2):
        a(f'v_add_u32 {vr(t4)}, {4 * ks}, {vr(t1)}')
        a(f'v_xor_b32 {vr(t4)}, {vr(t4)}, {vr(t2)}')
        a(f'v_lshl_add_u32 {vr(aad[0][ks])}, {vr(t4)}, 4, {vr(t3)}')
        a(f'v_add_u32 {vr(aad[1][ks])}, 0x10000, {vr(aad[0][ks])}')
    a(f'v_bfe_u32 {vr(t2)}, {lane}, 2, 2')
    a(f'v_lshl_add_u32 {vr(t3)}, {vr(t1)}, 3, {vr(t2)}')
    a(f'v_lshlrev_b32 {vr(t3)}, 8, {vr(t3)}')
    a(f'v_and_b32 {vr(t4)}, 1, {lane}')
    a(f'v_lshl_add_u32 {vr(t3)}, {vr(t4)}, 3, {vr(t3)}')
    a(f'v_add_u32 {vr(t3)}, 0x4000, {vr(t3)}')
    a(f'v_and_b32 {vr(t4)}, 1, {vr(t1)}')
    a(f'v_lshl_or_b32 {vr(t2)}, {vr(t4)}, 2, {vr(t2)}')
    a(f'v_lshlrev_b32 {vr(t2)}, 1, {vr(t2)}')
    a(f'v_bfe_u32 {vr(t4)}, {lane}, 1, 1')
    a(f's_lshl_b32 {sr(S_T2)}, {sr(swn)}, 3')
    a(f'v_add_u32 {vr(t4)}, {sr(S_T2)}, {vr(t4)}')
    for nt in range(4):
        a(f'v_add_u32 {vr(wad[0][nt])}, {2 * nt}, {vr(t4)}')
        a(f'v_xor_b32 {vr(wad[0][nt])}, {vr(wad[0][nt])}, {vr(t2)}')
        a(f'v_lshl_add_u32 {vr(wad[0][nt])}, {vr(wad[0][nt])}, 4, {vr(t3)}')
        a(f'v_add_u32 {vr(wad[1][nt])}, 0x10000, {vr(wad[0][nt])}')
    for i in range(4):
        a(f'v_mov_b32 {vr(ones + i)}, {sr(S_ONES)}')

    def reads(t):
        c, ks = t // 2, t % 2
        slot = c % 4
        half, off = slot // 2, (slot % 2) * S1_SLOT
        s = t % 2
        L = []
        for mt in range(4):
            L.append(f'ds_read_b128 {vr(fX[s] + 4 * mt, 4)}, {vr(aad[half][ks])} offset:{off + mt * 2048}')
        for nt in range(4):
            L.append(f'ds_read_b64_tr_b16 {vr(fW[s] + 4 * nt, 2)}, {vr(wad[half][nt])} offset:{off + ks * 8192}')
            L.append(f'ds_read_b64_tr_b16 {vr(fW[s] + 4 * nt + 2, 2)}, {vr(wad[half][nt])} offset:{off + ks * 8192 + 1024}')
        return L
    def mfmas(t):
        s = t % 2
        L = []
        first = (t == 0)
        for nt in range(4):
            for mt in range(4):
                d = vr(acc + (mt * 4 + nt) * 4, 4)
                X, W = vr(fX[s] + 4 * mt, 4), vr(fW[s] + 4 * nt, 4)
                A, B = (X, W) if vtype else (W, X)
                L.append(f'v_mfma_f32_16x16x32_bf16 {d}, {A}, {B}, {"0" if first else d}')
            d = vr(cs + 4 * nt, 4)
            W = vr(fW[s] + 4 * nt, 4); O = vr(ones, 4)
            A, B = (O, W) if vtype else (W, O)
            L.append(f'v_mfma_f32_16x16x32_bf16 {d}, {A}, {B}, {"0" if first else d}')
        return L
    stamp(a, o, 2)
    a('s_barrier')
    stamp(a, o, 3)
    for r in reads(0): a(r)
    if o.dbg:
        a('s_waitcnt lgkmcnt(0)')
        dump(a, list(range(fX[0], fX[0] + 16)) + list(range(fW[0], fW[0] + 16)), 0)
    for t in range(20):
        a('s_waitcnt lgkmcnt(0)')
        R = []
        if t + 1 < 20:
            if (t + 1) % 2 == 0:
                a('s_barrier')
                c1 = (t + 1) // 2
                if c1 in (1, 3, 5, 9): stamp(a, o, {1: 4, 3: 5, 5: 6, 9: 7}[c1])
            R = reads(t + 1)
        M = mfmas(t)
        if o.nomfma: M = M[:1]
        for i, m in enumerate(M):
            a(m)
            if i < len(R): a(R[i])
        if o.nomfma:
            for r in R[1:]: a(r)
    a('s_barrier')
    stamp(a, o, 8)
    if o.dbg:
        dump(a, list(range(acc, acc + 16)) + list(range(cs, cs + 16)), 1)
    rst = V.alloc(16, 4); nmr = V.alloc(16, 4)
    sc = S_T3
    if not vtype:
        a(f'v_and_b32 {vr(t0)}, 15, {lane}')
        a(f's_lshl_b32 {sr(S_T2)}, {sr(swm)}, 8')
        a(f's_add_u32 {sr(S_T2)}, {sr(S_T2)}, {S1_STATS}')
        a(f'v_lshl_add_u32 {vr(t0)}, {vr(t0)}, 2, {sr(S_T2)}')
        for mt in range(4):
            a(f'ds_read_b32 {vr(rst + mt)}, {vr(t0)} offset:{mt * 64}')
            a(f'ds_read_b32 {vr(nmr + mt)}, {vr(t0)} offset:{512 + mt * 64}')
        a(f's_cmp_lt_u32 {sr(S_CB)}, 5')
        a(f's_cselect_b32 {sr(sc)}, {f2u(QSCALE):#x}, 1.0')
        sad = V.alloc(4)
        a(f's_lshl_b32 {sr(S_T2)}, {sr(S_CB)}, 5')
        a(f's_lshl_b32 {sr(S_T4)}, {sr(swn)}, 4')
        a(f's_add_u32 {sr(S_T2)}, {sr(S_T2)}, {sr(S_T4)}')
        a(f'v_add_u32 {vr(t1)}, {sr(S_T2)}, {vr(t1)}')
        a(f'v_and_b32 {vr(t0)}, 15, {lane}')
        a(f'v_lshlrev_b32 {vr(t0)}, 3, {vr(t0)}')
        a(f's_mov_b32 {sr(S_T4)}, {HEADB}')
        for nt in range(4):
            a(f'v_add_u32 {vr(t2)}, {4 * nt}, {vr(t1)}')
            a(f'v_mul_u32_u24 {vr(t3)}, 205, {vr(t2)}')
            a(f'v_lshrrev_b32 {vr(t3)}, 10, {vr(t3)}')
            a(f'v_mul_u32_u24 {vr(t4)}, 5, {vr(t3)}')
            a(f'v_sub_u32 {vr(t2)}, {vr(t2)}, {vr(t4)}')
            a(f'v_lshl_add_u32 {vr(t2)}, {vr(t2)}, 7, {vr(t0)}')
            a(f'v_mad_u32_u24 {vr(sad + nt)}, {vr(t3)}, {sr(S_T4)}, {vr(t2)}')
        a(f's_lshl_b32 {sr(S_T2)}, {sr(S_RB)}, 3')
        a(f's_lshl_b32 {sr(S_T4)}, {sr(swm)}, 2')
        a(f's_add_u32 {sr(S_T2)}, {sr(S_T2)}, {sr(S_T4)}')
        a(f's_mul_i32 {sr(S_T2)}, {sr(S_T2)}, 640')
        a(f's_add_u32 {sr(S_T2)}, {sr(S_T2)}, {WS_QK}')
        a('s_waitcnt lgkmcnt(0)')
        for mt in range(4):
            a(f'v_mul_f32 {vr(rst + mt)}, {sr(sc)}, {vr(rst + mt)}')
            a(f'v_mul_f32 {vr(nmr + mt)}, {sr(sc)}, {vr(nmr + mt)}')
        pk = V.alloc(8, 2)
        k = 0
        for nt in range(4):
            for mt in range(4):
                d = acc + (mt * 4 + nt) * 4
                for r in range(4):
                    a(f'v_mul_f32 {vr(d + r)}, {vr(d + r)}, {vr(rst + mt)}')
                    a(f'v_fmac_f32 {vr(d + r)}, {vr(cs + 4 * nt + r)}, {vr(nmr + mt)}')
                p = pk + 2 * (k % 4); k += 1
                a(f'v_cvt_pk_bf16_f32 {vr(p)}, {vr(d)}, {vr(d + 1)}')
                a(f'v_cvt_pk_bf16_f32 {vr(p + 1)}, {vr(d + 2)}, {vr(d + 3)}')
                a(f'buffer_store_dwordx2 {vr(p, 2)}, {vr(sad + nt)}, {sr(S_WS, 4)}, {sr(S_T2)} offen offset:{mt * 640} sc1')
    else:
        a(f'v_lshrrev_b32 {vr(t1)}, 4, {lane}')
        a(f's_lshl_b32 {sr(S_T2)}, {sr(swm)}, 8')
        a(f's_add_u32 {sr(S_T2)}, {sr(S_T2)}, {S1_STATS}')
        a(f'v_lshl_add_u32 {vr(t0)}, {vr(t1)}, 4, {sr(S_T2)}')
        for mt in range(4):
            a(f'ds_read_b128 {vr(rst + 4 * mt, 4)}, {vr(t0)} offset:{mt * 64}')
            a(f'ds_read_b128 {vr(nmr + 4 * mt, 4)}, {vr(t0)} offset:{512 + mt * 64}')
        sad = V.alloc(4)
        a(f's_sub_u32 {sr(S_T2)}, {sr(S_CB)}, 10')
        a(f's_lshl_b32 {sr(S_T2)}, {sr(S_T2)}, 7')
        a(f's_lshl_b32 {sr(S_T4)}, {sr(swn)}, 6')
        a(f's_add_u32 {sr(S_T2)}, {sr(S_T2)}, {sr(S_T4)}')
        a(f'v_and_b32 {vr(t0)}, 15, {lane}')
        a(f'v_add_u32 {vr(t0)}, {sr(S_T2)}, {vr(t0)}')
        a(f's_mov_b32 {sr(S_T4)}, {HEADB}')
        tA = V.alloc(); tB = V.alloc()
        for nt in range(4):
            a(f'v_add_u32 {vr(t2)}, {16 * nt}, {vr(t0)}')
            a(f'v_mul_u32_u24 {vr(t3)}, 3277, {vr(t2)}')
            a(f'v_lshrrev_b32 {vr(t3)}, 16, {vr(t3)}')
            a(f'v_mul_u32_u24 {vr(t4)}, 20, {vr(t3)}')
            a(f'v_sub_u32 {vr(t2)}, {vr(t2)}, {vr(t4)}')
            a(f'v_lshlrev_b32 {vr(tA)}, 8, {vr(t1)}')
            a(f'v_lshlrev_b32 {vr(tB)}, 6, {vr(t1)}')
            a(f'v_add_u32 {vr(tB)}, 768, {vr(tB)}')
            a(f'v_cmp_gt_u32 vcc, 16, {vr(t2)}')
            a(f'v_cndmask_b32 {vr(tA)}, {vr(tB)}, {vr(tA)}, vcc')
            a(f'v_lshl_add_u32 {vr(tA)}, {vr(t2)}, 4, {vr(tA)}')
            a(f'v_mad_u32_u24 {vr(sad + nt)}, {vr(t3)}, {sr(S_T4)}, {vr(tA)}')
        a(f's_lshl_b32 {sr(S_T2)}, {sr(S_RB)}, 2')
        a(f's_lshl_b32 {sr(S_T4)}, {sr(swm)}, 1')
        a(f's_add_u32 {sr(S_T2)}, {sr(S_T2)}, {sr(S_T4)}')
        a(f's_mul_i32 {sr(S_T2)}, {sr(S_T2)}, 1280')
        a(f's_add_u32 {sr(S_T2)}, {sr(S_T2)}, {WS_VF}')
        a('s_waitcnt lgkmcnt(0)')
        pk = V.alloc(8, 4)
        k = 0
        for nt in range(4):
            for i in range(2):
                p = pk + 4 * (k % 2); k += 1
                for hm in range(2):
                    mt = 2 * i + hm
                    d = acc + (mt * 4 + nt) * 4
                    for r in range(4):
                        a(f'v_mul_f32 {vr(d + r)}, {vr(d + r)}, {vr(rst + 4 * mt + r)}')
                        a(f'v_fmac_f32 {vr(d + r)}, {vr(cs + 4 * nt)}, {vr(nmr + 4 * mt + r)}')
                    a(f'v_cvt_pk_bf16_f32 {vr(p + 2 * hm)}, {vr(d)}, {vr(d + 1)}')
                    a(f'v_cvt_pk_bf16_f32 {vr(p + 2 * hm + 1)}, {vr(d + 2)}, {vr(d + 3)}')
                a(f'buffer_store_dwordx4 {vr(p, 4)}, {vr(sad + nt)}, {sr(S_WS, 4)}, {sr(S_T2)} offen offset:{i * 1280} sc1')
    stamp(a, o, 1)
    a('s_waitcnt vmcnt(0)')
    a('s_barrier')
    stamp(a, o, 9)


def set_flag(a, soff_reg, sc1=True):
    a(f'v_mov_b32 v1, {sr(S_TAG)}')
    a('v_mov_b32 v2, 0')
    a('s_mov_b64 exec, 1')
    a(f'buffer_store_dword v1, v2, {sr(S_WS, 4)}, {sr(soff_reg)} offen{" sc1" if sc1 else ""}')
    a('s_mov_b64 exec, -1')

SPIN_MAX = 1 << 17
def poll(a, voffs, tmp):
    top = a.newlabel('L_poll'); done = a.newlabel('L_polldone')
    a(f's_mov_b32 {sr(S_SPIN)}, 0')
    a.label(top)
    for vo, t in zip(voffs, tmp):
        a(f'buffer_load_dword {vr(t)}, {vr(vo)}, {sr(S_WS, 4)}, 0 offen sc1')
    a('s_waitcnt vmcnt(0)')
    for k, t in enumerate(tmp):
        a(f'v_xor_b32 {vr(t)}, {sr(S_TAG)}, {vr(t)}')
        if k: a(f'v_or_b32 {vr(tmp[0])}, {vr(tmp[0])}, {vr(t)}')
    a(f'v_cmp_ne_u32 vcc, 0, {vr(tmp[0])}')
    a(f's_cmp_eq_u64 vcc, 0')
    a(f's_cbranch_scc1 {done}')
    a(f's_add_u32 {sr(S_SPIN)}, {sr(S_SPIN)}, 1')
    a(f's_cmp_lt_u32 {sr(S_SPIN)}, {SPIN_MAX}')
    a(f's_cbranch_scc0 {done}')
    a('s_sleep 1')
    a(f's_branch {top}')
    a.label(done)

def stsc(o):
    return ' sc1' if o.safe else ''

S_RB2, S_P, S_R0, S_CI = 43, 44, 58, 59
S2_K = [0, 30720]; S2_V = [15360, 46080]
S2_ONES = 61440
S2_OST = 61504
NEG = 0xf149f2ca

def s2_roles(a):
    a(f's_lshr_b32 {sr(S_T0)}, {sr(S_MEM)}, 4')
    a(f's_lshl_b32 {sr(S_RB2)}, {sr(S_TEAM)}, 1')
    a(f's_add_u32 {sr(S_RB2)}, {sr(S_RB2)}, {sr(S_T0)}')
    a(f's_and_b32 {sr(S_P)}, {sr(S_MEM)}, 15')
    a(f's_lshr_b32 {sr(S_T0)}, {sr(S_MEM)}, 3')
    a(f's_lshl_b32 {sr(S_T0)}, {sr(S_T0)}, 6')
    a(f's_lshl_b32 {sr(S_R0)}, {sr(S_TEAM)}, 8')
    a(f's_add_u32 {sr(S_R0)}, {sr(S_R0)}, {sr(S_T0)}')
    a(f's_and_b32 {sr(S_CI)}, {sr(S_MEM)}, 7')

def s2(a, o):
    a.comment('---- S2 attention ----')
    V = RegAlloc(256, 1)
    lane = 'v0'
    t0, t1, t2, t3, t4 = [V.alloc() for _ in range(5)]
    skip = a.newlabel('L_s2_nopoll')
    a(f's_cmp_lg_u32 {sr(S_WAVE)}, 0')
    a(f's_cbranch_scc1 {skip}')
    a(f'v_min_u32 {vr(t0)}, 13, {lane}')
    a(f'v_and_b32 {vr(t1)}, 1, {vr(t0)}')
    a(f'v_lshrrev_b32 {vr(t0)}, 1, {vr(t0)}')
    a(f's_mul_i32 {sr(S_T0)}, {sr(S_P)}, 40')
    a(f's_lshr_b32 {sr(S_T1)}, {sr(S_T0)}, 7')
    a(f's_add_u32 {sr(S_T0)}, {sr(S_T0)}, 39')
    a(f's_lshr_b32 {sr(S_T0)}, {sr(S_T0)}, 7')
    a(f's_sub_u32 {sr(S_T0)}, {sr(S_T0)}, {sr(S_T1)}')
    a(f'v_mul_u32_u24 {vr(t1)}, {sr(S_T0)}, {vr(t1)}')
    a(f'v_add_u32 {vr(t1)}, {sr(S_T1)}, {vr(t1)}')
    a(f'v_add_u32 {vr(t2)}, 2, {vr(t0)}')
    a(f'v_mul_u32_u24 {vr(t2)}, 86, {vr(t2)}')
    a(f'v_lshrrev_b32 {vr(t2)}, 8, {vr(t2)}')
    a(f'v_mul_u32_u24 {vr(t3)}, 5, {vr(t2)}')
    a(f'v_add_u32 {vr(t1)}, {vr(t1)}, {vr(t3)}')
    a(f'v_mul_u32_u24 {vr(t3)}, 3, {vr(t2)}')
    a(f'v_sub_u32 {vr(t3)}, {vr(t0)}, {vr(t3)}')
    a(f'v_add_u32 {vr(t3)}, 2, {vr(t3)}')
    a(f'v_cmp_eq_u32 vcc, 0, {vr(t2)}')
    a(f'v_cndmask_b32 {vr(t3)}, {vr(t3)}, 0, vcc')
    a(f'v_sub_i32 {vr(t3)}, {sr(S_RB2)}, {vr(t3)}')
    a(f'v_max_i32 {vr(t3)}, 0, {vr(t3)}')
    a(f'v_lshl_add_u32 {vr(t1)}, {vr(t3)}, 4, {vr(t1)}')
    a(f'v_lshlrev_b32 {vr(t1)}, 2, {vr(t1)}')
    a(f'v_add_u32 {vr(t1)}, {WS_FL + FL1}, {vr(t1)}')
    poll(a, [t1], [t2])
    a.label(skip)
    a(f'v_mov_b32 {vr(t0)}, {sr(S_ONES)}')
    a(f'v_and_b32 {vr(t1)}, 3, {lane}')
    a(f'v_lshlrev_b32 {vr(t1)}, 2, {vr(t1)}')
    a(f'ds_write_b32 {vr(t1)}, {vr(t0)} offset:{S2_ONES}')
    a('s_barrier')
    stamp(a, o, 2)
    shh, sqb = S_T0, S_T1
    a(f's_lshr_b32 {sr(S_T2)}, {sr(S_WAVE)}, 1')
    a(f's_lshr_b32 {sr(S_T3)}, {sr(S_T2)}, 1')
    a(f's_lshl_b32 {sr(S_T4)}, {sr(S_P)}, 1')
    a(f's_add_u32 {sr(S_T4)}, {sr(S_T4)}, {sr(S_T3)}')
    a(f's_mul_i32 {sr(S_T4)}, {sr(S_T4)}, {HEADB}')
    a(f's_and_b32 {sr(S_T3)}, {sr(S_T2)}, 1')
    a(f's_cmp_eq_u32 {sr(S_T3)}, 0')
    scsel(a, sr(S_T5), WS_QK + 32 * HEADB, WS_VF)
    a(f's_add_u32 {sr(S_T4)}, {sr(S_T4)}, {sr(S_T5)}')
    a(f's_mul_i32 {sr(S_T5)}, {sr(S_RB2)}, 5120')
    a(f's_add_u32 {sr(S_T4)}, {sr(S_T4)}, {sr(S_T5)}')
    a(f's_sub_u32 {sr(S_T4)}, {sr(S_T4)}, 10240')
    a(f's_mul_i32 {sr(S_T5)}, {sr(S_T2)}, 15360')
    a(f's_and_b32 {sr(S_T6)}, {sr(S_WAVE)}, 1')
    a(f's_lshl_b32 {sr(S_T6)}, {sr(S_T6)}, 10')
    a(f's_add_u32 {sr(S_T4)}, {sr(S_T4)}, {sr(S_T6)}')
    a(f's_add_u32 {sr(S_T5)}, {sr(S_T5)}, {sr(S_T6)}')
    a(f'v_lshlrev_b32 {vr(t0)}, 4, {lane}')
    a(f's_mov_b32 {sr(S_T7)}, 0')
    a(f's_cmp_eq_u32 {sr(S_RB2)}, 1')
    a(f's_cselect_b32 {sr(S_T7)}, 5, {sr(S_T7)}')
    a(f's_cmp_eq_u32 {sr(S_RB2)}, 0')
    a(f's_cselect_b32 {sr(S_T7)}, 10, {sr(S_T7)}')
    a(f's_and_b32 s73, {sr(S_WAVE)}, 1')
    for n in range(8):
        a(f's_add_u32 s74, {sr(S_T4)}, {n * 2048}')
        a(f's_cmp_ge_u32 s73, {sr(S_T7)}')
        a(f's_cselect_b32 s74, s74, 0x7f000000')
        a(f's_add_u32 m0, {sr(S_T5)}, {n * 2048}')
        if n == 7:
            lab = a.newlabel('L_s2_skipdma')
            a(f's_cmp_ge_u32 s73, 15')
            a(f's_cbranch_scc1 {lab}')
            a(f'buffer_load_dwordx4 {vr(t0)}, {sr(S_WS, 4)}, s74 offen sc1 lds')
            a.label(lab)
        else:
            a(f'buffer_load_dwordx4 {vr(t0)}, {sr(S_WS, 4)}, s74 offen sc1 lds')
        a(f's_add_u32 s73, s73, 2')
    a(f's_lshr_b32 {sr(shh)}, {sr(S_WAVE)}, 2')
    a(f's_and_b32 {sr(sqb)}, {sr(S_WAVE)}, 3')
    qf = V.alloc(8, 4)
    vq1, vq2 = V.alloc(), V.alloc()
    a(f'v_lshrrev_b32 {vr(t1)}, 4, {lane}')
    a(f'v_and_b32 {vr(t2)}, 15, {lane}')
    a(f'v_lshlrev_b32 {vr(t3)}, 8, {vr(t1)}')
    a(f'v_lshl_add_u32 {vr(t3)}, {vr(t2)}, 3, {vr(t3)}')
    a(f'v_mov_b32 {vr(t4)}, 0x7f000000')
    a(f'v_cmp_gt_u32 vcc, 3, {vr(t1)}')
    a(f'v_cndmask_b32 {vr(vq1)}, {vr(t4)}, {vr(t3)}, vcc')
    a(f'v_add_u32 {vr(t3)}, 128, {vr(t3)}')
    a(f'v_cmp_gt_u32 vcc, 2, {vr(t1)}')
    a(f'v_cndmask_b32 {vr(vq2)}, {vr(t4)}, {vr(t3)}, vcc')
    a(f's_lshl_b32 {sr(S_T2)}, {sr(S_P)}, 1')
    a(f's_add_u32 {sr(S_T2)}, {sr(S_T2)}, {sr(shh)}')
    a(f's_mul_i32 {sr(S_T2)}, {sr(S_T2)}, {HEADB}')
    a(f's_lshl_b32 {sr(S_T3)}, {sr(S_RB2)}, 3')
    a(f's_lshl_b32 {sr(S_T4)}, {sr(sqb)}, 1')
    a(f's_add_u32 {sr(S_T3)}, {sr(S_T3)}, {sr(S_T4)}')
    a(f's_mul_i32 {sr(S_T3)}, {sr(S_T3)}, 640')
    a(f's_add_u32 {sr(S_T2)}, {sr(S_T2)}, {sr(S_T3)}')
    a(f's_add_u32 {sr(S_T2)}, {sr(S_T2)}, {WS_QK}')
    for qt in range(2):
        a(f'buffer_load_dwordx2 {vr(qf + 4 * qt, 2)}, {vr(vq1)}, {sr(S_WS, 4)}, {sr(S_T2)} offen offset:{qt * 640} sc1')
        a(f'buffer_load_dwordx2 {vr(qf + 4 * qt + 2, 2)}, {vr(vq2)}, {sr(S_WS, 4)}, {sr(S_T2)} offen offset:{qt * 640} sc1')
    for r in range(4):
        a(f'v_lshl_add_u32 {vr(t3)}, {vr(t1)}, 2, {r}')
        a(f'v_cmp_le_u32 {sr(S_MSK + 2 * r, 2)}, {vr(t3)}, {vr(t2)}')
    kad = V.alloc(); vad0 = V.alloc(); vad1 = V.alloc(); vstr = V.alloc()
    a(f's_mul_i32 {sr(S_T2)}, {sr(shh)}, 30720')
    a(f's_mul_i32 {sr(S_T3)}, {sr(sqb)}, 1280')
    a(f's_add_u32 {sr(S_T2)}, {sr(S_T2)}, {sr(S_T3)}')
    a(f'v_lshlrev_b32 {vr(t3)}, 8, {vr(t1)}')
    a(f'v_lshl_add_u32 {vr(t3)}, {vr(t2)}, 3, {vr(t3)}')
    a(f'v_add_u32 {vr(kad)}, {sr(S_T2)}, {vr(t3)}')
    a(f's_add_u32 {sr(S_T2)}, {sr(S_T2)}, 15360')
    a(f'v_lshl_add_u32 {vr(vad0)}, {lane}, 4, {sr(S_T2)}')
    a(f'v_lshlrev_b32 {vr(t3)}, 6, {vr(t1)}')
    a(f'v_lshl_add_u32 {vr(t3)}, {vr(t2)}, 4, {vr(t3)}')
    a(f's_add_u32 {sr(S_T2)}, {sr(S_T2)}, 1024')
    a(f'v_add_u32 {vr(t3)}, {sr(S_T2)}, {vr(t3)}')
    a(f'v_mov_b32 {vr(t4)}, {S2_ONES}')
    a(f'v_cmp_gt_u32 vcc, 4, {vr(t2)}')
    a(f'v_cndmask_b32 {vr(vad1)}, {vr(t4)}, {vr(t3)}, vcc')
    a(f'v_mov_b32 {vr(t4)}, 0')
    a(f'v_mov_b32 {vr(t3)}, 1280')
    a(f'v_cndmask_b32 {vr(vstr)}, {vr(t4)}, {vr(t3)}, vcc')
    sc = V.alloc(144, 4)
    def S(qt, kt): return sc + (qt * 18 + kt) * 4
    kf = [V.alloc(4, 4) for _ in range(4)]
    cin = V.alloc(4, 4)
    neg = V.alloc()
    a(f'v_mov_b32 {vr(neg)}, {NEG:#x}')
    a('s_waitcnt vmcnt(0) lgkmcnt(0)')
    a('s_barrier')
    stamp(a, o, 3)
    a(f's_lshl_b32 {sr(S_T2)}, {sr(S_RB2)}, 2')
    a(f's_add_u32 {sr(S_T2)}, {sr(S_T2)}, {sr(sqb)}')
    def used(qt, kt):
        if kt == 0 and qt == 1: return False
        if kt == 17 and qt == 0: return False
        return True
    def kread(kt):
        f = kf[kt % 4]
        return [f'ds_read_b64 {vr(f, 2)}, {vr(kad)} offset:{kt * 640}', f'ds_read_b64 {vr(f + 2, 2)}, {vr(kad)} offset:{kt * 640 + 128}']
    for kt in range(3):
        for x in kread(kt): a(x)
    for kt in range(18):
        if kt + 3 < 18:
            for x in kread(kt + 3): a(x)
        if kt % 2 == 0:
            jj = kt // 2
            a(f's_cmp_ge_u32 {sr(S_T2)}, {8 - jj}')
            a(f's_cselect_b32 {sr(S_T3)}, 0, {NEG:#x}')
            for r in range(4): a(f'v_mov_b32 {vr(cin + r)}, {sr(S_T3)}')
        rem = min(17, kt + 3) - kt
        a(f's_waitcnt lgkmcnt({2 * rem})')
        for qt in range(2):
            if used(qt, kt):
                a(f'v_mfma_f32_16x16x32_bf16 {vr(S(qt, kt), 4)}, {vr(kf[kt % 4], 4)}, {vr(qf + 4 * qt, 4)}, {vr(cin, 4)}')
    stamp(a, o, 4)
    mx = [V.alloc(), V.alloc()]
    vf = [V.alloc(8, 4) for _ in range(2)]
    oacc = V.alloc(16, 4)
    def part_tiles(qt):
        return (0, 16) if qt == 0 else (1, 17)
    for qt in range(2):
        kf_, kl_ = part_tiles(qt)
        for r in range(4):
            a(f'v_cndmask_b32 {vr(S(qt, kf_) + r)}, {vr(S(qt, kf_) + r)}, {vr(neg)}, {sr(S_MSK + 2 * r, 2)}')
            a(f'v_cndmask_b32 {vr(S(qt, kl_) + r)}, {vr(neg)}, {vr(S(qt, kl_) + r)}, {sr(S_MSK + 2 * r, 2)}')
        regs = [S(qt, kt) + r for kt in range(18) if used(qt, kt) for r in range(4)]
        m = mx[qt]
        a(f'v_max3_f32 {vr(m)}, {vr(regs[0])}, {vr(regs[1])}, {vr(regs[2])}')
        rest = regs[3:]
        m2 = t0
        a(f'v_max3_f32 {vr(m2)}, {vr(rest[0])}, {vr(rest[1])}, {vr(rest[2])}')
        rest = rest[3:]
        k = 0
        while len(rest) >= 2:
            tgt = m if k % 2 == 0 else m2
            a(f'v_max3_f32 {vr(tgt)}, {vr(tgt)}, {vr(rest[0])}, {vr(rest[1])}')
            rest = rest[2:]; k += 1
        if rest:
            a(f'v_max_f32 {vr(m)}, {vr(m)}, {vr(rest[0])}')
        a(f'v_max_f32 {vr(m)}, {vr(m)}, {vr(m2)}')
        a(f'v_mov_b32 {vr(t0)}, {vr(m)}')
        a(f'v_permlane32_swap_b32 {vr(t0)}, {vr(m)}')
        a(f'v_max_f32 {vr(m)}, {vr(m)}, {vr(t0)}')
        a(f'v_mov_b32 {vr(t0)}, {vr(m)}')
        a(f'v_permlane16_swap_b32 {vr(t0)}, {vr(m)}')
        a(f'v_max_f32 {vr(m)}, {vr(m)}, {vr(t0)}')
    stamp(a, o, 5)
    def vread(jj):
        f = vf[jj % 2]
        L = [f'ds_read_b128 {vr(f, 4)}, {vr(vad0)} offset:{jj * 1280}', f'ds_read_b128 {vr(f + 4, 4)}, {vr(vad1)}']
        if jj < 8: L.append(f'v_add_u32 {vr(vad1)}, {vr(vad1)}, {vr(vstr)}')
        return L
    for x in vread(0): a(x)
    for jj in range(9):
        for qt in range(2):
            for h in range(2):
                kt = 2 * jj + h
                b = S(qt, kt)
                if used(qt, kt):
                    for r in range(4):
                        a(f'v_sub_f32 {vr(b + r)}, {vr(b + r)}, {vr(mx[qt])}')
                    for r in range(4):
                        a(f'v_exp_f32 {vr(b + r)}, {vr(b + r)}')
            b0, b1 = S(qt, 2 * jj), S(qt, 2 * jj + 1)
            u0, u1 = used(qt, 2 * jj), used(qt, 2 * jj + 1)
            if u0:
                a(f'v_cvt_pk_bf16_f32 {vr(b0)}, {vr(b0)}, {vr(b0 + 1)}')
                a(f'v_cvt_pk_bf16_f32 {vr(b0 + 1)}, {vr(b0 + 2)}, {vr(b0 + 3)}')
            else:
                a(f'v_mov_b32 {vr(b0)}, 0'); a(f'v_mov_b32 {vr(b0 + 1)}, 0')
            if u1:
                a(f'v_cvt_pk_bf16_f32 {vr(b0 + 2)}, {vr(b1)}, {vr(b1 + 1)}')
                a(f'v_cvt_pk_bf16_f32 {vr(b0 + 3)}, {vr(b1 + 2)}, {vr(b1 + 3)}')
            else:
                a(f'v_mov_b32 {vr(b0 + 2)}, 0'); a(f'v_mov_b32 {vr(b0 + 3)}, 0')
        if jj + 1 < 9:
            L = vread(jj + 1)
            for x in L: a(x)
            a('s_waitcnt lgkmcnt(2)')
        else:
            a('s_waitcnt lgkmcnt(0)')
        f = vf[jj % 2]
        for qt in range(2):
            for tl in range(2):
                d = vr(oacc + (qt * 2 + tl) * 4, 4)
                a(f'v_mfma_f32_16x16x32_bf16 {d}, {vr(f + 4 * tl, 4)}, {vr(S(qt, 2 * jj), 4)}, {"0" if jj == 0 else d}')
    stamp(a, o, 6)
    oad0, oad1 = V.alloc(), V.alloc()
    a(f'v_lshrrev_b32 {vr(t1)}, 4, {lane}')
    a(f'v_and_b32 {vr(t2)}, 15, {lane}')
    a(f's_mul_i32 {sr(S_T2)}, {sr(shh)}, 5')
    a(f'v_add_u32 {vr(t3)}, {sr(S_T2)}, {vr(t1)}')
    a(f'v_lshrrev_b32 {vr(t4)}, 1, {vr(t3)}')
    a(f'v_lshlrev_b32 {vr(t4)}, 8, {vr(t4)}')
    a(f'v_and_b32 {vr(t3)}, 1, {vr(t3)}')
    a(f'v_lshl_add_u32 {vr(t4)}, {vr(t3)}, 3, {vr(t4)}')
    a(f'v_lshl_add_u32 {vr(t4)}, {vr(t2)}, 4, {vr(t4)}')
    a(f's_mul_i32 {sr(S_T3)}, {sr(sqb)}, 2560')
    a(f's_add_u32 {sr(S_T3)}, {sr(S_T3)}, {S2_OST}')
    a(f'v_add_u32 {vr(oad0)}, {sr(S_T3)}, {vr(t4)}')
    a(f's_mul_i32 {sr(S_T2)}, {sr(shh)}, {4 * 256 + 8 - 512}')
    a(f's_add_u32 {sr(S_T2)}, {sr(S_T2)}, 512')
    a(f's_add_u32 {sr(S_T2)}, {sr(S_T2)}, {sr(S_T3)}')
    a(f'v_lshl_add_u32 {vr(t4)}, {vr(t2)}, 4, {sr(S_T2)}')
    a(f'v_mov_b32 {vr(t3)}, {S2_ONES + 16}')
    a(f'v_cmp_eq_u32 vcc, 0, {vr(t1)}')
    a(f'v_cndmask_b32 {vr(oad1)}, {vr(t3)}, {vr(t4)}, vcc')
    pk = V.alloc(8, 2)
    for qt in range(2):
        o0, o1 = oacc + (qt * 2) * 4, oacc + (qt * 2 + 1) * 4
        a(f'v_mov_b32 {vr(t0)}, {vr(o1)}')
        a(f'v_mov_b32 {vr(t3)}, {vr(o1)}')
        a(f'v_permlane16_swap_b32 {vr(t0)}, {vr(t3)}')
        a(f'v_rcp_f32 {vr(t3)}, {vr(t3)}')
        for r in range(4):
            a(f'v_mul_f32 {vr(o0 + r)}, {vr(o0 + r)}, {vr(t3)}')
            a(f'v_mul_f32 {vr(o1 + r)}, {vr(o1 + r)}, {vr(t3)}')
        p = pk + 4 * qt
        a(f'v_cvt_pk_bf16_f32 {vr(p)}, {vr(o0)}, {vr(o0 + 1)}')
        a(f'v_cvt_pk_bf16_f32 {vr(p + 1)}, {vr(o0 + 2)}, {vr(o0 + 3)}')
        a(f'v_cvt_pk_bf16_f32 {vr(p + 2)}, {vr(o1)}, {vr(o1 + 1)}')
        a(f'v_cvt_pk_bf16_f32 {vr(p + 3)}, {vr(o1 + 2)}, {vr(o1 + 3)}')
        a(f'ds_write_b64 {vr(oad0)}, {vr(p, 2)} offset:{qt * 1280}')
        if qt == 0:
            a(f'ds_write_b64 {vr(oad1)}, {vr(p + 2, 2)}')
        else:
            a(f'v_mov_b32 {vr(t4)}, 1280')
            a(f'v_mov_b32 {vr(t0)}, 0')
            a(f'v_cndmask_b32 {vr(t4)}, {vr(t0)}, {vr(t4)}, vcc')
            a(f'v_add_u32 {vr(oad1)}, {vr(oad1)}, {vr(t4)}')
            a(f'ds_write_b64 {vr(oad1)}, {vr(p + 2, 2)}')
    a('s_waitcnt lgkmcnt(0)')
    a('s_barrier')
    a(f's_lshl_b32 {sr(S_T2)}, {sr(S_WAVE)}, 6')
    a(f'v_add_u32 {vr(t0)}, {sr(S_T2)}, {lane}')
    cp = V.alloc(8, 4)
    ga = [V.alloc(), V.alloc()]
    a(f's_mul_i32 {sr(S_T3)}, {sr(S_RB2)}, {8 * 20480}')
    a(f's_mul_i32 {sr(S_T4)}, {sr(S_P)}, 1280')
    a(f's_add_u32 {sr(S_T3)}, {sr(S_T3)}, {sr(S_T4)}')
    a(f's_add_u32 {sr(S_T3)}, {sr(S_T3)}, {WS_OF}')
    for k in range(2):
        if k: a(f'v_add_u32 {vr(t0)}, 512, {vr(t0)}')
        a(f'v_lshlrev_b32 {vr(t1)}, 4, {vr(t0)}')
        a(f'ds_read_b128 {vr(cp + 4 * k, 4)}, {vr(t1)} offset:{S2_OST}')
        a(f'v_mul_u32_u24 {vr(t2)}, 820, {vr(t0)}')
        a(f'v_lshrrev_b32 {vr(t2)}, 16, {vr(t2)}')
        a(f'v_mul_u32_u24 {vr(t3)}, 80, {vr(t2)}')
        a(f'v_sub_u32 {vr(t3)}, {vr(t0)}, {vr(t3)}')
        a(f'v_mul_u32_u24 {vr(t2)}, 20480, {vr(t2)}')
        a(f'v_lshl_add_u32 {vr(ga[k])}, {vr(t3)}, 4, {vr(t2)}')
    a(f'v_mov_b32 {vr(t3)}, 0x7f000000')
    a(f'v_cmp_gt_u32 vcc, 640, {vr(t0)}')
    a(f'v_cndmask_b32 {vr(ga[1])}, {vr(t3)}, {vr(ga[1])}, vcc')
    a('s_waitcnt lgkmcnt(0)')
    for k in range(2):
        a(f'buffer_store_dwordx4 {vr(cp + 4 * k, 4)}, {vr(ga[k])}, {sr(S_WS, 4)}, {sr(S_T3)} offen{stsc(o)}')
    a('s_waitcnt vmcnt(0)')
    a('s_barrier')
    stamp(a, o, 7)
    lab = a.newlabel('L_s2_noflag')
    a(f's_cmp_lg_u32 {sr(S_WAVE)}, 0')
    a(f's_cbranch_scc1 {lab}')
    a(f's_lshl_b32 {sr(S_T0)}, {sr(S_TEAM)}, 5')
    a(f's_add_u32 {sr(S_T0)}, {sr(S_T0)}, {sr(S_MEM)}')
    a(f's_lshl_b32 {sr(S_T0)}, {sr(S_T0)}, 2')
    a(f's_add_u32 {sr(S_T0)}, {sr(S_T0)}, {WS_FL + FL2}')
    set_flag(a, S_T0, o.safe)
    a.label(lab)


VH = 236
GELU_C = 2.0 * (2.0 / 3.141592653589793) ** 0.5 * 1.4426950408889634

def flag_off(a, dst, base):
    a(f's_lshl_b32 {sr(dst)}, {sr(S_TEAM)}, 5')
    a(f's_add_u32 {sr(dst)}, {sr(dst)}, {sr(S_MEM)}')
    a(f's_lshl_b32 {sr(dst)}, {sr(dst)}, 2')
    a(f's_add_u32 {sr(dst)}, {sr(dst)}, {WS_FL + base}')

def poll_team(a, base, first_expr_sreg, nmask):
    a(f'v_and_b32 v1, {nmask}, v0')
    a(f's_lshl_b32 {sr(S_T0)}, {sr(S_TEAM)}, 5')
    a(f's_add_u32 {sr(S_T0)}, {sr(S_T0)}, {sr(first_expr_sreg)}')
    a(f's_lshl_b32 {sr(S_T0)}, {sr(S_T0)}, 2')
    a(f's_add_u32 {sr(S_T0)}, {sr(S_T0)}, {WS_FL + base}')
    a(f'v_lshl_add_u32 v1, v1, 2, {sr(S_T0)}')
    poll(a, [1], [2])

def s3_loader(a, o):
    a.comment('---- S3 loader ----')
    lab = a.newlabel('L_s3l_nopoll')
    a(f's_cmp_lg_u32 {sr(S_WAVE)}, 4')
    a(f's_cbranch_scc1 {lab}')
    for k in range(4):
        a(f'v_lshlrev_b32 v{10 + k}, 2, v0')
        a(f'v_add_u32 v{10 + k}, {WS_FL + FL1 + 256 * k}, v{10 + k}')
    poll(a, [10, 11, 12, 13], [14, 15, 16, 17])
    a.label(lab)
    a('s_barrier')
    a('v_lshlrev_b32 v1, 4, v0')
    a(f's_mul_i32 {sr(S_T0)}, {sr(S_CI)}, 102400')
    a(f's_lshl_b32 {sr(S_T1)}, {sr(S_LW)}, 10')
    a(f's_add_u32 {sr(S_T0)}, {sr(S_T0)}, {sr(S_T1)}')
    a(f's_add_u32 {sr(S_T0)}, {sr(S_T0)}, {WS_WT3}')
    for m in range(25):
        a(f's_add_u32 m0, {sr(S_T1)}, {m * 4096}')
        a(f's_add_u32 {sr(S_T2)}, {sr(S_T0)}, {m * 4096}')
        a(f'buffer_load_dwordx4 v1, {sr(S_WS, 4)}, {sr(S_T2)} offen sc1 lds')
    a('s_waitcnt vmcnt(0)')
    a('s_barrier')
    a('s_barrier')

def s3_compute(a, o):
    a.comment('---- S3 compute ----')
    V = RegAlloc(236, 1)
    lane = 'v0'
    lab = a.newlabel('L_s3c_nopoll')
    a(f's_cmp_lg_u32 {sr(S_WAVE)}, 0')
    a(f's_cbranch_scc1 {lab}')
    a(f's_lshr_b32 {sr(S_T1)}, {sr(S_R0)}, 7')
    a(f's_and_b32 {sr(S_T1)}, {sr(S_T1)}, 1')
    a(f's_lshl_b32 {sr(S_T1)}, {sr(S_T1)}, 4')
    poll_team(a, FL2, S_T1, 15)
    a.label(lab)
    t0, t1, t2, t3 = [V.alloc() for _ in range(4)]
    xr = V.alloc(10, 2)
    a(f'v_and_b32 {vr(t0)}, 15, {lane}')
    a(f'v_lshrrev_b32 {vr(t1)}, 4, {lane}')
    a(f'v_mul_u32_u24 {vr(t2)}, 0x500, {vr(t0)}')
    a(f'v_lshl_add_u32 {vr(t2)}, {vr(t1)}, 3, {vr(t2)}')
    a(f's_lshl_b32 {sr(S_T2)}, {sr(S_WAVE)}, 4')
    a(f's_add_u32 {sr(S_T2)}, {sr(S_T2)}, {sr(S_R0)}')
    a(f's_mul_i32 {sr(S_T2)}, {sr(S_T2)}, 1280')
    a(f's_mul_i32 {sr(S_T3)}, {sr(S_CI)}, 160')
    a(f's_add_u32 {sr(S_OUTOFF)}, {sr(S_T2)}, {sr(S_T3)}')
    for j in range(5):
        a(f'buffer_load_dwordx2 {vr(xr + 2 * j, 2)}, {vr(t2)}, {sr(S_X, 4)}, {sr(S_OUTOFF)} offen offset:{j * 32}')
    a('s_barrier')
    stamp(a, o, 2)
    af = V.alloc(80, 4)
    al = V.alloc()
    a(f'v_lshlrev_b32 {vr(al)}, 4, {lane}')
    a(f's_lshr_b32 {sr(S_TT)}, {sr(S_R0)}, 4')
    a(f's_add_u32 {sr(S_TT)}, {sr(S_TT)}, {sr(S_WAVE)}')
    a(f's_mul_i32 {sr(S_T2)}, {sr(S_TT)}, 20480')
    a(f's_add_u32 {sr(S_T2)}, {sr(S_T2)}, {WS_OF}')
    for s in range(20):
        if s and s % 4 == 0: a(f's_add_u32 {sr(S_T2)}, {sr(S_T2)}, 4096')
        a(f'buffer_load_dwordx4 {vr(af + 4 * s, 4)}, {vr(al)}, {sr(S_WS, 4)}, {sr(S_T2)} offen offset:{(s % 4) * 1024} sc1')
    acc = V.alloc(20, 4)
    wf = [V.alloc(20, 4) for _ in range(2)]
    al2 = V.alloc()
    a(f'v_add_u32 {vr(al2)}, 0x10000, {vr(al)}')
    a('s_barrier')
    stamp(a, o, 3)
    def wreads(s):
        L = []
        for j in range(5):
            off = (s * 5 + j) * 1024
            ad, off = (al, off) if off < 65536 else (al2, off - 65536)
            L.append(f'ds_read_b128 {vr(wf[s % 2] + 4 * j, 4)}, {vr(ad)} offset:{off}')
        return L
    for x in wreads(0): a(x)
    for s in range(20):
        R = wreads(s + 1) if s + 1 < 20 else []
        a(f's_waitcnt vmcnt({19 - s}) lgkmcnt(0)')
        for j in range(5):
            d = vr(acc + 4 * j, 4)
            a(f'v_mfma_f32_16x16x32_bf16 {d}, {vr(wf[s % 2] + 4 * j, 4)}, {vr(af + 4 * s, 4)}, {"0" if s == 0 else d}')
            if j < len(R): a(R[j])
    a('s_barrier')
    stamp(a, o, 4)
    pk = V.alloc(10, 2)
    for j in range(5):
        for hf in range(2):
            xs = xr + 2 * j + hf
            a(f'v_lshlrev_b32 {vr(t0)}, 16, {vr(xs)}')
            a(f'v_and_b32 {vr(t1)}, 0xffff0000, {vr(xs)}')
            a(f'v_add_f32 {vr(acc + 4 * j + 2 * hf)}, {vr(acc + 4 * j + 2 * hf)}, {vr(t0)}')
            a(f'v_add_f32 {vr(acc + 4 * j + 2 * hf + 1)}, {vr(acc + 4 * j + 2 * hf + 1)}, {vr(t1)}')
            a(f'v_cvt_pk_bf16_f32 {vr(pk + 2 * j + hf)}, {vr(acc + 4 * j + 2 * hf)}, {vr(acc + 4 * j + 2 * hf + 1)}')
            a(f'v_lshlrev_b32 {vr(VH + 4 * j + 2 * hf)}, 16, {vr(pk + 2 * j + hf)}')
            a(f'v_and_b32 {vr(VH + 4 * j + 2 * hf + 1)}, 0xffff0000, {vr(pk + 2 * j + hf)}')
    a(f'v_and_b32 {vr(t0)}, 15, {lane}')
    a(f'v_lshrrev_b32 {vr(t1)}, 4, {lane}')
    a(f'v_lshlrev_b32 {vr(t2)}, 8, {vr(t1)}')
    a(f'v_lshl_add_u32 {vr(t2)}, {vr(t0)}, 4, {vr(t2)}')
    a(f's_mul_i32 {sr(S_T2)}, {sr(S_TT)}, 20480')
    a(f's_add_u32 {sr(S_T2)}, {sr(S_T2)}, {WS_HF}')
    a(f's_mul_i32 {sr(S_T3)}, {sr(S_CI)}, 5')
    for j in range(5):
        a(f's_add_u32 {sr(S_T4)}, {sr(S_T3)}, {j}')
        a(f's_lshr_b32 {sr(S_T5)}, {sr(S_T4)}, 1')
        a(f's_lshl_b32 {sr(S_T5)}, {sr(S_T5)}, 10')
        a(f's_and_b32 {sr(S_T4)}, {sr(S_T4)}, 1')
        a(f's_lshl_b32 {sr(S_T4)}, {sr(S_T4)}, 3')
        a(f's_add_u32 {sr(S_T5)}, {sr(S_T5)}, {sr(S_T4)}')
        a(f's_add_u32 {sr(S_T5)}, {sr(S_T5)}, {sr(S_T2)}')
        a(f'buffer_store_dwordx2 {vr(pk + 2 * j, 2)}, {vr(t2)}, {sr(S_WS, 4)}, {sr(S_T5)} offen{stsc(o)}')
    sm = V.alloc(); m2 = V.alloc()
    a(f'v_add_f32 {vr(sm)}, {vr(VH)}, {vr(VH + 1)}')
    for k in range(2, 20):
        a(f'v_add_f32 {vr(sm)}, {vr(sm)}, {vr(VH + k)}')
    def xg_reduce(acc_, op):
        a(f'v_mov_b32 {vr(t3)}, {vr(acc_)}')
        a(f'v_permlane32_swap_b32 {vr(t3)}, {vr(acc_)}')
        a(f'{op} {vr(acc_)}, {vr(acc_)}, {vr(t3)}')
        a(f'v_mov_b32 {vr(t3)}, {vr(acc_)}')
        a(f'v_permlane16_swap_b32 {vr(t3)}, {vr(acc_)}')
        a(f'{op} {vr(acc_)}, {vr(acc_)}, {vr(t3)}')
    xg_reduce(sm, 'v_add_f32')
    a(f'v_mul_f32 {vr(sm)}, {f2u(1.0 / 80.0):#x}, {vr(sm)}')
    for k in range(20):
        a(f'v_sub_f32 {vr(t3)}, {vr(VH + k)}, {vr(sm)}')
        if k == 0: a(f'v_mul_f32 {vr(m2)}, {vr(t3)}, {vr(t3)}')
        else: a(f'v_fmac_f32 {vr(m2)}, {vr(t3)}, {vr(t3)}')
    xg_reduce(m2, 'v_add_f32')
    st = V.alloc(2, 2)
    a(f'v_mov_b32 {vr(st)}, {vr(sm)}')
    a(f'v_mov_b32 {vr(st + 1)}, {vr(m2)}')
    a(f'v_lshlrev_b32 {vr(t2)}, 6, {vr(t0)}')
    a(f'v_mov_b32 {vr(t3)}, 0x7f000000')
    a(f'v_cmp_eq_u32 vcc, 0, {vr(t1)}')
    a(f'v_cndmask_b32 {vr(t2)}, {vr(t3)}, {vr(t2)}, vcc')
    a(f's_lshl_b32 {sr(S_T2)}, {sr(S_TT)}, 10')
    a(f's_lshl_b32 {sr(S_T3)}, {sr(S_CI)}, 3')
    a(f's_add_u32 {sr(S_T2)}, {sr(S_T2)}, {sr(S_T3)}')
    a(f's_add_u32 {sr(S_T2)}, {sr(S_T2)}, {WS_ST2}')
    a(f'buffer_store_dwordx2 {vr(st, 2)}, {vr(t2)}, {sr(S_WS, 4)}, {sr(S_T2)} offen{stsc(o)}')
    a('s_waitcnt vmcnt(0)')
    a('s_barrier')
    stamp(a, o, 5)
    lab = a.newlabel('L_s3c_noflag')
    a(f's_cmp_lg_u32 {sr(S_WAVE)}, 0')
    a(f's_cbranch_scc1 {lab}')
    flag_off(a, S_T0, FL3)
    set_flag(a, S_T0, o.safe)
    a(f's_and_b32 {sr(S_T1)}, {sr(S_MEM)}, 24')
    poll_team(a, FL3, S_T1, 7)
    a.label(lab)
    a('s_barrier')

S_OUTOFF, S_TT = 74, 75
S4_SLOT = 32768
S4_NS = 5

def s4_loader(a, o):
    a.comment('---- S4 loader ----')
    V = RegAlloc(256, 1)
    vW = [V.alloc() for _ in range(3)]
    vA = V.alloc()
    t0, t1, t2, t3, t4 = [V.alloc() for _ in range(5)]
    for i in range(3):
        a(f'v_add_u32 {vr(t0)}, {64 * i}, v0')
        a(f'v_mul_u32_u24 {vr(t1)}, 2731, {vr(t0)}')
        a(f'v_lshrrev_b32 {vr(t1)}, 16, {vr(t1)}')
        a(f'v_mul_u32_u24 {vr(t2)}, 24, {vr(t1)}')
        a(f'v_sub_u32 {vr(t2)}, {vr(t0)}, {vr(t2)}')
        a(f'v_bfe_u32 {vr(t3)}, {vr(t1)}, 1, 2')
        a(f'v_lshlrev_b32 {vr(t3)}, 1, {vr(t3)}')
        a(f'v_xor_b32 {vr(t2)}, {vr(t2)}, {vr(t3)}')
        a(f'v_mul_u32_u24 {vr(t1)}, 3072, {vr(t1)}')
        a(f'v_lshl_add_u32 {vr(vW[i])}, {vr(t2)}, 4, {vr(t1)}')
    a(f'v_lshlrev_b32 {vr(vA)}, 4, v0')
    sW, sA, sLW, sLA = S_T0, S_T1, S_T2, S_T3
    a(f's_mul_i32 {sr(sW)}, {sr(S_LW)}, {16 * 3072}')
    a(f's_mul_i32 {sr(S_T4)}, {sr(S_CI)}, 384')
    a(f's_add_u32 {sr(sW)}, {sr(sW)}, {sr(S_T4)}')
    a(f's_mul_i32 {sr(sLW)}, {sr(S_LW)}, {16 * 384}')
    a(f's_add_u32 {sr(sLW)}, {sr(sLW)}, 8192')
    a(f's_lshr_b32 {sr(sA)}, {sr(S_R0)}, 4')
    a(f's_add_u32 {sr(sA)}, {sr(sA)}, {sr(S_LW)}')
    a(f's_mul_i32 {sr(sA)}, {sr(sA)}, 20480')
    a(f's_add_u32 {sr(sA)}, {sr(sA)}, {WS_HF}')
    a(f's_lshl_b32 {sr(sLA)}, {sr(S_LW)}, 11')
    q = []
    def issueW(c):
        slot = (c % S4_NS) * S4_SLOT
        for n in range(6):
            grp, i = n // 3, n % 3
            a(f's_add_u32 m0, {sr(sLW)}, {slot + n * 1024}')
            a(f's_add_u32 {sr(S_T4)}, {sr(sW)}, {(64 * c + 8 * grp) * 3072}')
            a(f'buffer_load_dwordx4 {vr(vW[i])}, {sr(S_W1, 4)}, {sr(S_T4)} offen lds')
        q.extend([('c', c)] * 6)
    def issueA(c):
        slot = (c % S4_NS) * S4_SLOT
        for ks in range(2):
            a(f's_add_u32 m0, {sr(sLA)}, {slot + ks * 1024}')
            a(f's_add_u32 {sr(S_T4)}, {sr(sA)}, {(2 * c + ks) * 1024}')
            a(f'buffer_load_dwordx4 {vr(vA)}, {sr(S_WS, 4)}, {sr(S_T4)} offen sc1 lds')
        q.extend([('c', c)] * 2)
    def wait_for(tag):
        idx = max(i for i, t in enumerate(q) if t == tag)
        n = len(q) - 1 - idx
        a(f's_waitcnt vmcnt({n})')
        del q[:idx + 1]
    for c in range(S4_NS): issueW(c)
    a('s_barrier')
    a('s_barrier')
    for c in range(S4_NS): issueA(c)
    for c in range(10):
        wait_for(('c', c))
        a('s_barrier')
        if c >= 1 and c + S4_NS - 1 < 10:
            issueW(c + S4_NS - 1); issueA(c + S4_NS - 1)
    a('s_barrier')

def s4_compute(a, o):
    a.comment('---- S4 compute ----')
    V = RegAlloc(236, 1)
    lane = 'v0'
    acc = V.alloc(48, 4)
    cs = V.alloc(12, 4)
    ones = V.alloc(4, 4)
    fA = [V.alloc(16, 4) for _ in range(2)]
    fW = [V.alloc(12, 4) for _ in range(2)]
    aad = [V.alloc() for _ in range(3)]
    wad = [[V.alloc() for _ in range(3)] for _ in range(3)]
    t0, t1, t2, t3, t4 = [V.alloc() for _ in range(5)]
    stt = V.alloc(64, 4)
    b1r = V.alloc(6, 2)
    a(f'v_and_b32 {vr(t0)}, 15, {lane}')
    a(f'v_lshrrev_b32 {vr(t1)}, 4, {lane}')
    a(f'v_lshlrev_b32 {vr(t2)}, 6, {vr(t0)}')
    a(f's_lshl_b32 {sr(S_T2)}, {sr(S_R0)}, 6')
    a(f's_add_u32 {sr(S_T2)}, {sr(S_T2)}, {WS_ST2}')
    for mt in range(4):
        for k in range(4):
            a(f'buffer_load_dwordx4 {vr(stt + mt * 16 + 4 * k, 4)}, {vr(t2)}, {sr(S_WS, 4)}, {sr(S_T2)} offen offset:{mt * 1024 + k * 16} sc1')
    a(f'v_lshlrev_b32 {vr(t2)}, 3, {vr(t1)}')
    a(f's_mul_i32 {sr(S_T2)}, {sr(S_CI)}, 384')
    a(f's_mul_i32 {sr(S_T3)}, {sr(S_WAVE)}, 96')
    a(f's_add_u32 {sr(S_T2)}, {sr(S_T2)}, {sr(S_T3)}')
    for jn in range(3):
        a(f'buffer_load_dwordx2 {vr(b1r + 2 * jn, 2)}, {vr(t2)}, {sr(S_B1, 4)}, {sr(S_T2)} offen offset:{jn * 32}')
    a(f'v_lshlrev_b32 {vr(aad[0])}, 4, {lane}')
    a(f'v_add_u32 {vr(aad[1])}, 0x10000, {vr(aad[0])}')
    a(f'v_add_u32 {vr(aad[2])}, 0x20000, {vr(aad[0])}')
    a(f'v_bfe_u32 {vr(t2)}, {lane}, 2, 2')
    a(f'v_lshl_add_u32 {vr(t2)}, {vr(t1)}, 2, {vr(t2)}')
    a(f'v_bfe_u32 {vr(t3)}, {vr(t2)}, 1, 2')
    a(f'v_mul_u32_u24 {vr(t2)}, 384, {vr(t2)}')
    a(f'v_and_b32 {vr(t4)}, 3, {lane}')
    a(f'v_lshl_add_u32 {vr(t2)}, {vr(t4)}, 3, {vr(t2)}')
    a(f'v_add_u32 {vr(t2)}, 8192, {vr(t2)}')
    a(f's_mul_i32 {sr(S_T2)}, {sr(S_WAVE)}, 3')
    for jn in range(3):
        a(f's_add_u32 {sr(S_T3)}, {sr(S_T2)}, {jn}')
        a(f'v_xor_b32 {vr(t4)}, {sr(S_T3)}, {vr(t3)}')
        a(f'v_lshl_add_u32 {vr(wad[0][jn])}, {vr(t4)}, 5, {vr(t2)}')
        a(f'v_add_u32 {vr(wad[1][jn])}, 0x10000, {vr(wad[0][jn])}')
        a(f'v_add_u32 {vr(wad[2][jn])}, 0x20000, {vr(wad[0][jn])}')
    for i in range(4): a(f'v_mov_b32 {vr(ones + i)}, {sr(S_ONES)}')
    def lds(base_regs, off):
        b = off // 65536
        return base_regs[b], off % 65536
    def reads(t):
        c, ks = t // 2, t % 2
        slot = (c % S4_NS) * S4_SLOT
        s = t % 2
        L = []
        for mt in range(4):
            off = slot + mt * 2048 + ks * 1024
            b, off = off // 65536, off % 65536
            L.append(f'ds_read_b128 {vr(fA[s] + 4 * mt, 4)}, {vr(aad[b])} offset:{off}')
        for jn in range(3):
            for h in range(2):
                off = slot + (32 * ks + 16 * h) * 384
                b, off = off // 65536, off % 65536
                L.append(f'ds_read_b64_tr_b16 {vr(fW[s] + 4 * jn + 2 * h, 2)}, {vr(wad[b][jn])} offset:{off}')
        return L
    def mfmas(t):
        s = t % 2
        L = []
        for jn in range(3):
            for mt in range(4):
                d = vr(acc + (mt * 3 + jn) * 4, 4)
                L.append(f'v_mfma_f32_16x16x32_bf16 {d}, {vr(fW[s] + 4 * jn, 4)}, {vr(fA[s] + 4 * mt, 4)}, {"0" if t == 0 else d}')
            d = vr(cs + 4 * jn, 4)
            L.append(f'v_mfma_f32_16x16x32_bf16 {d}, {vr(fW[s] + 4 * jn, 4)}, {vr(ones, 4)}, {"0" if t == 0 else d}')
        return L
    a('s_barrier')
    stamp(a, o, 6)
    for r in reads(0): a(r)
    for t in range(20):
        a('s_waitcnt lgkmcnt(0)')
        R = []
        if t + 1 < 20:
            if (t + 1) % 2 == 0: a('s_barrier')
            R = reads(t + 1)
        M = mfmas(t)
        for i, m in enumerate(M):
            a(m)
            if i < len(R): a(R[i])
    a('s_barrier')
    stamp(a, o, 7)
    for x in fA: V.release(x, 16)
    for x in fW: V.release(x, 12)
    a('s_waitcnt vmcnt(0)')
    rst = V.alloc(4); nmr = V.alloc(4)
    for mt in range(4):
        b = stt + mt * 16
        a(f'v_add_f32 {vr(t0)}, {vr(b)}, {vr(b + 2)}')
        for i in range(2, 8): a(f'v_add_f32 {vr(t0)}, {vr(t0)}, {vr(b + 2 * i)}')
        a(f'v_mul_f32 {vr(t0)}, 0.125, {vr(t0)}')
        a(f'v_add_f32 {vr(t1)}, {vr(b + 1)}, {vr(b + 3)}')
        for i in range(2, 8): a(f'v_add_f32 {vr(t1)}, {vr(t1)}, {vr(b + 2 * i + 1)}')
        for i in range(8):
            a(f'v_sub_f32 {vr(t2)}, {vr(b + 2 * i)}, {vr(t0)}')
            if i == 0: a(f'v_mul_f32 {vr(t3)}, {vr(t2)}, {vr(t2)}')
            else: a(f'v_fmac_f32 {vr(t3)}, {vr(t2)}, {vr(t2)}')
        a(f'v_mov_b32 {vr(t4)}, 0x42a00000')
        a(f'v_fmac_f32 {vr(t1)}, {vr(t3)}, {vr(t4)}')
        a(f'v_mov_b32 {vr(t4)}, {f2u(1e-5):#x}')
        a(f'v_fmac_f32 {vr(t4)}, {f2u(1.0 / 640.0):#x}, {vr(t1)}')
        a(f'v_rsq_f32 {vr(rst + mt)}, {vr(t4)}')
        a(f'v_mul_f32 {vr(nmr + mt)}, {vr(t0)}, {vr(rst + mt)}')
        a(f'v_sub_f32 {vr(nmr + mt)}, 0, {vr(nmr + mt)}')
    bf = V.alloc(12, 4)
    for jn in range(3):
        for hf in range(2):
            a(f'v_lshlrev_b32 {vr(bf + 4 * jn + 2 * hf)}, 16, {vr(b1r + 2 * jn + hf)}')
            a(f'v_and_b32 {vr(bf + 4 * jn + 2 * hf + 1)}, 0xffff0000, {vr(b1r + 2 * jn + hf)}')
    a(f'v_and_b32 {vr(t0)}, 15, {lane}')
    a(f'v_lshrrev_b32 {vr(t1)}, 4, {lane}')
    gad = V.alloc()
    a(f'v_lshlrev_b32 {vr(gad)}, 8, {vr(t1)}')
    a(f'v_lshl_add_u32 {vr(gad)}, {vr(t0)}, 4, {vr(gad)}')
    a(f's_lshr_b32 {sr(S_T2)}, {sr(S_R0)}, 4')
    a(f's_mul_i32 {sr(S_T2)}, {sr(S_T2)}, 49152')
    a(f's_add_u32 {sr(S_T2)}, {sr(S_T2)}, {WS_GF}')
    a(f's_mul_i32 {sr(S_T3)}, {sr(S_CI)}, 12')
    a(f's_mul_i32 {sr(S_T4)}, {sr(S_WAVE)}, 3')
    a(f's_add_u32 {sr(S_T3)}, {sr(S_T3)}, {sr(S_T4)}')
    c0 = -GELU_C; c1 = -GELU_C * 0.044715
    a(f's_mov_b32 {sr(S_T6)}, {f2u(c0):#x}')
    a(f's_mov_b32 {sr(S_T7)}, {f2u(c1):#x}')
    vc0 = V.alloc()
    a(f'v_mov_b32 {vr(vc0)}, {sr(S_T6)}')
    tt = V.alloc(8); pk = V.alloc(8, 2)
    k = 0
    for jn in range(3):
        a(f's_add_u32 {sr(S_T4)}, {sr(S_T3)}, {jn}')
        a(f's_lshr_b32 {sr(S_T5)}, {sr(S_T4)}, 1')
        a(f's_lshl_b32 {sr(S_T5)}, {sr(S_T5)}, 10')
        a(f's_and_b32 {sr(S_T4)}, {sr(S_T4)}, 1')
        a(f's_lshl_b32 {sr(S_T4)}, {sr(S_T4)}, 3')
        a(f's_add_u32 {sr(S_T5)}, {sr(S_T5)}, {sr(S_T4)}')
        a(f's_add_u32 {sr(S_T5)}, {sr(S_T5)}, {sr(S_T2)}')
        for mt in range(4):
            d = acc + (mt * 3 + jn) * 4
            for r in range(4):
                a(f'v_fma_f32 {vr(tt + r)}, {vr(nmr + mt)}, {vr(cs + 4 * jn + r)}, {vr(bf + 4 * jn + r)}')
            for r in range(4):
                a(f'v_fma_f32 {vr(d + r)}, {vr(d + r)}, {vr(rst + mt)}, {vr(tt + r)}')
            for r in range(4):
                a(f'v_mul_f32 {vr(tt + r)}, {vr(d + r)}, {vr(d + r)}')
            for r in range(4):
                a(f'v_fma_f32 {vr(tt + r)}, {vr(tt + r)}, {sr(S_T7)}, {vr(vc0)}')
            for r in range(4):
                a(f'v_mul_f32 {vr(tt + r)}, {vr(tt + r)}, {vr(d + r)}')
            for r in range(4):
                a(f'v_exp_f32 {vr(tt + r)}, {vr(tt + r)}')
            for r in range(4):
                a(f'v_add_f32 {vr(tt + r)}, 1.0, {vr(tt + r)}')
            for r in range(4):
                a(f'v_rcp_f32 {vr(tt + r)}, {vr(tt + r)}')
            for r in range(4):
                a(f'v_mul_f32 {vr(d + r)}, {vr(d + r)}, {vr(tt + r)}')
            p = pk + 2 * (k % 4); k += 1
            a(f'v_cvt_pk_bf16_f32 {vr(p)}, {vr(d)}, {vr(d + 1)}')
            a(f'v_cvt_pk_bf16_f32 {vr(p + 1)}, {vr(d + 2)}, {vr(d + 3)}')
            a(f's_add_u32 {sr(S_T4)}, {sr(S_T5)}, {mt * 49152}')
            a(f'buffer_store_dwordx2 {vr(p, 2)}, {vr(gad)}, {sr(S_WS, 4)}, {sr(S_T4)} offen{stsc(o)}')
    a('s_waitcnt vmcnt(0)')
    a('s_barrier')
    stamp(a, o, 8)
    lab = a.newlabel('L_s4c_noflag')
    a(f's_cmp_lg_u32 {sr(S_WAVE)}, 0')
    a(f's_cbranch_scc1 {lab}')
    flag_off(a, S_T0, FL4)
    set_flag(a, S_T0, o.safe)
    a(f's_and_b32 {sr(S_T1)}, {sr(S_MEM)}, 24')
    poll_team(a, FL4, S_T1, 7)
    a.label(lab)
    a('s_barrier')

S5_CH = 20480
S5_NS = 8
def s5_loader(a, o):
    a.comment('---- S5 loader ----')
    a('v_lshlrev_b32 v1, 4, v0')
    a(f's_mul_i32 {sr(S_T0)}, {sr(S_CI)}, {48 * 5120}')
    a(f's_lshl_b32 {sr(S_T1)}, {sr(S_LW)}, 10')
    a(f's_add_u32 {sr(S_T0)}, {sr(S_T0)}, {sr(S_T1)}')
    a(f's_add_u32 {sr(S_T0)}, {sr(S_T0)}, {WS_WT5}')
    q = []
    def issue(c):
        slot = (c % S5_NS) * S5_CH
        for n in range(5):
            a(f's_add_u32 m0, {sr(S_T1)}, {slot + n * 4096}')
            a(f's_add_u32 {sr(S_T2)}, {sr(S_T0)}, {c * S5_CH + n * 4096}')
            a(f'buffer_load_dwordx4 v1, {sr(S_WS, 4)}, {sr(S_T2)} offen sc1 lds')
        q.extend([('c', c)] * 5)
    def wait_for(tag):
        idx = max(i for i, t in enumerate(q) if t == tag)
        n = len(q) - 1 - idx
        a(f's_waitcnt vmcnt({n})')
        del q[:idx + 1]
    for c in range(S5_NS): issue(c)
    a('s_barrier')
    a('s_barrier')
    for c in range(12):
        wait_for(('c', c))
        a('s_barrier')
        if c >= 1 and c + S5_NS - 1 < 12: issue(c + S5_NS - 1)

def s5_compute(a, o):
    a.comment('---- S5 compute ----')
    V = RegAlloc(236, 1)
    lane = 'v0'
    NA = 32
    af = V.alloc(4 * NA, 4)
    acc = V.alloc(20, 4)
    wf = [V.alloc(20, 4) for _ in range(2)]
    al = [V.alloc() for _ in range(3)]
    b2r = V.alloc(10, 2)
    t0, t1, t2 = [V.alloc() for _ in range(3)]
    a(f'v_lshlrev_b32 {vr(al[0])}, 4, {lane}')
    a(f'v_add_u32 {vr(al[1])}, 0x10000, {vr(al[0])}')
    a(f'v_add_u32 {vr(al[2])}, 0x20000, {vr(al[0])}')
    a(f's_mul_i32 {sr(S_T2)}, {sr(S_TT)}, 49152')
    a(f's_add_u32 {sr(S_T2)}, {sr(S_T2)}, {WS_GF}')
    vq = []
    a(f'v_lshrrev_b32 {vr(t1)}, 4, {lane}')
    a(f'v_lshlrev_b32 {vr(t2)}, 3, {vr(t1)}')
    a(f's_mul_i32 {sr(S_T3)}, {sr(S_CI)}, 160')
    for j in range(5):
        a(f'buffer_load_dwordx2 {vr(b2r + 2 * j, 2)}, {vr(t2)}, {sr(S_B2, 4)}, {sr(S_T3)} offen offset:{j * 32}')
        vq.append(('b', j))
    def aload(s):
        a(f's_add_u32 {sr(S_T4)}, {sr(S_T2)}, {(s // 4) * 4096}')
        a(f'buffer_load_dwordx4 {vr(af + 4 * (s % NA), 4)}, {vr(al[0])}, {sr(S_WS, 4)}, {sr(S_T4)} offen offset:{(s % 4) * 1024} sc1')
        vq.append(('a', s))
    for s in range(NA): aload(s)
    def wreads(s):
        c = s // 4
        L = []
        for j in range(5):
            off = (c % S5_NS) * S5_CH + ((s % 4) * 5 + j) * 1024
            L.append(f'ds_read_b128 {vr(wf[s % 2] + 4 * j, 4)}, {vr(al[off // 65536])} offset:{off % 65536}')
        return L
    a('s_barrier')
    stamp(a, o, 9)
    for x in wreads(0): a(x)
    for s in range(48):
        idx = vq.index(('a', s))
        n = len(vq) - 1 - idx
        a(f's_waitcnt vmcnt({n}) lgkmcnt(0)')
        del vq[:idx + 1]
        R = []
        if s + 1 < 48:
            if (s + 1) % 4 == 0: a('s_barrier')
            R = wreads(s + 1)
        for j in range(5):
            d = vr(acc + 4 * j, 4)
            a(f'v_mfma_f32_16x16x32_bf16 {d}, {vr(wf[s % 2] + 4 * j, 4)}, {vr(af + 4 * (s % NA), 4)}, {"0" if s == 0 else d}')
            if j < len(R): a(R[j])
        if s + NA < 48:
            aload(s + NA)
    pk = V.alloc(10, 2)
    for j in range(5):
        for hf in range(2):
            bs = b2r + 2 * j + hf
            i0 = 4 * j + 2 * hf
            a(f'v_lshlrev_b32 {vr(t0)}, 16, {vr(bs)}')
            a(f'v_and_b32 {vr(t1)}, 0xffff0000, {vr(bs)}')
            a(f'v_add_f32 {vr(t0)}, {vr(t0)}, {vr(VH + i0)}')
            a(f'v_add_f32 {vr(t1)}, {vr(t1)}, {vr(VH + i0 + 1)}')
            a(f'v_add_f32 {vr(acc + i0)}, {vr(acc + i0)}, {vr(t0)}')
            a(f'v_add_f32 {vr(acc + i0 + 1)}, {vr(acc + i0 + 1)}, {vr(t1)}')
            a(f'v_cvt_pk_bf16_f32 {vr(pk + 2 * j + hf)}, {vr(acc + i0)}, {vr(acc + i0 + 1)}')
    a(f'v_and_b32 {vr(t0)}, 15, {lane}')
    a(f'v_lshrrev_b32 {vr(t1)}, 4, {lane}')
    a(f'v_mul_u32_u24 {vr(t2)}, 0x500, {vr(t0)}')
    a(f'v_lshl_add_u32 {vr(t2)}, {vr(t1)}, 3, {vr(t2)}')
    for j in range(5):
        a(f'buffer_store_dwordx2 {vr(pk + 2 * j, 2)}, {vr(t2)}, {sr(S_OUT, 4)}, {sr(S_OUTOFF)} offen offset:{j * 32}')

def s345(a, o):
    a(f's_cmp_ge_u32 {sr(S_WAVE)}, 4')
    a('s_cbranch_scc1 L_s345_loader')
    if o.prof3: o.prof = True
    stamp(a, o, 1)
    s3_compute(a, o)
    s4_compute(a, o)
    s5_compute(a, o)
    a('s_branch L_s345_done')
    a.label('L_s345_loader')
    o.prof = False
    s3_loader(a, o)
    s4_loader(a, o)
    s5_loader(a, o)
    a.label('L_s345_done')
    if o.prof3: o.prof = True

def epoch_update(a, o):
    lab = a.newlabel('L_noepoch')
    a('s_cmp_lg_u32 s2, 0')
    a(f's_cbranch_scc1 {lab}')
    a(f's_cmp_lg_u32 {sr(S_WAVE)}, 0')
    a(f's_cbranch_scc1 {lab}')
    for k in range(4):
        a(f'v_lshlrev_b32 v{10 + k}, 2, v0')
        a(f'v_add_u32 v{10 + k}, {WS_FL + FL1 + 256 * k}, v{10 + k}')
    poll(a, [10, 11, 12, 13], [14, 15, 16, 17])
    a(f's_mov_b32 {sr(S_T0)}, {WS_FL + FLE}')
    set_flag(a, S_T0, True)
    a.label(lab)

def build(o):
    a = Asm()
    prologue(a, o)
    a(f's_cmp_ge_u32 {sr(S_WAVE)}, 4')
    a('s_cbranch_scc1 L_s1_loader')
    a(f's_cmp_eq_u32 {sr(S_CB)}, 15')
    a('s_cbranch_scc1 L_s1_spare_c')
    a(f's_cmp_ge_u32 {sr(S_CB)}, 10')
    a('s_cbranch_scc1 L_s1_v')
    s1_compute(a, o, False)
    a('s_branch L_s1_done')
    a.label('L_s1_v')
    s1_compute(a, o, True)
    a('s_branch L_s1_done')
    a.label('L_s1_spare_c')
    a('s_barrier')
    a('s_branch L_s1_done')
    a.label('L_s1_loader')
    a(f's_cmp_eq_u32 {sr(S_CB)}, 15')
    a('s_cbranch_scc1 L_s1_spare_l')
    s1_loader(a, o)
    a('s_branch L_s1_done')
    a.label('L_s1_spare_l')
    s1_spare_loader(a, o)
    a.label('L_s1_done')
    a('s_waitcnt lgkmcnt(0)')
    a(f's_mul_i32 {sr(S_TAG)}, s72, 0x9E3779B1')
    a(f's_add_u32 {sr(S_TAG)}, {sr(S_TAG)}, 1')
    a(f's_cmp_lg_u32 {sr(S_WAVE)}, 0')
    a('s_cbranch_scc1 L_s1_flagdone')
    a(f's_lshl_b32 {sr(S_T0)}, {sr(S_RB)}, 4')
    a(f's_add_u32 {sr(S_T0)}, {sr(S_T0)}, {sr(S_CB)}')
    a(f's_lshl_b32 {sr(S_T0)}, {sr(S_T0)}, 2')
    a(f's_add_u32 {sr(S_T0)}, {sr(S_T0)}, {WS_FL + FL1}')
    set_flag(a, S_T0, True)
    a.label('L_s1_flagdone')
    if o.stop_after >= 2:
        if o.prof2: o.prof = True
        stamp(a, o, 1)
        s2_roles(a)
        s2(a, o)
    if o.stop_after >= 3:
        s345(a, o)
    epoch_update(a, o)
    stamps_out(a, o)
    a.label('L_exit')
    a('s_endpgm')
    body = a.finish()
    hdr = f"""; Fused persistent kernel: LN1+QKV -> sliding-window attention -> Wo+res -> LN2+W1+GELU -> W2+res
; @launch grid=(256,1,1) block=(512,1,1) lds=163840
.amdgcn_target "amdgcn-amd-amdhsa--gfx950"
.text
.globl {NAME}_kernel
.p2align 8
.type {NAME}_kernel,@function
{NAME}_kernel:
"""
    ftr = f""".section .rodata,"a"
.p2align 6
.amdhsa_kernel {NAME}_kernel
  .amdhsa_next_free_vgpr 256
  .amdhsa_next_free_sgpr 102
  .amdhsa_accum_offset 256
  .amdhsa_group_segment_fixed_size 0
  .amdhsa_kernarg_size 88
  .amdhsa_user_sgpr_count 2
  .amdhsa_user_sgpr_kernarg_segment_ptr 1
  .amdhsa_system_sgpr_workgroup_id_x 1
.end_amdhsa_kernel
"""
    return hdr + body + ftr

if __name__ == '__main__':
    o = Opt()
    o.prof2 = False
    o.prof3 = False
    for k in ('dbg', 'prof', 'prof2', 'prof3', 'nostats', 'nort', 'nomfma', 'nodma'):
        setattr(o, k, k in sys.argv)
    for arg in sys.argv[2:]:
        if arg.startswith('stop='): o.stop_after = int(arg[5:])
    out = sys.argv[1] if len(sys.argv) > 1 else 'k.s'
    open(out, 'w').write(build(o))
    print('wrote', out)
```

```python
import struct, sys
from asmgen import Asm, RegAlloc, vr, sr

NAME = "sequential_preLN__sliding_block__mixer_channel_mlp__prompt"

HEADB = 81920
WS_FL = 0x0
WS_QK = 0x10000
WS_VF = 0x510000
WS_OF = 0x790000
WS_HF = 0xA10000
WS_GF = 0xC90000
WS_WT3 = 0x1290000
WS_WT5 = 0x1360000
WS_ST2 = 0x1540000
WS_ST1 = 0x1560000
WS_WT4 = 0x1570000
WS_DBG = 0x1760000
WS_SIZE = 0x1860000
FL1, FL2, FL3, FLS, FLR, FLE, FLX, FL4 = 0x0, 0xA000, 0x2000, 0x3000, 0x4000, 0x5000, 0x6000, 0x8000

S_XCC = 3
S_X, S_WQKV, S_WO, S_W1, S_W2, S_WS, S_OUT, S_B1, S_B2 = 4, 8, 12, 16, 20, 24, 28, 32, 36
S_WAVE, S_TEAM, S_MEM, S_RB, S_CB, S_TAG, S_LW, S_GW = 40, 41, 42, 43, 44, 45, 46, 47
T = [48, 49, 50, 51, 52, 53, 54, 55]
S_SPIN, S_ONES = 56, 57
S_R0, S_CI = 58, 59
S_MSK = 60
S_EPOCH = 72
S_OUTOFF, S_TT = 74, 75
S_SRD2 = 76
S_FAST = 100
S_U = [68, 69, 70, 71, 73]

QSCALE = (20 ** -0.5) * 1.4426950408889634
GELU_C = 2.0 * (2.0 / 3.141592653589793) ** 0.5 * 1.4426950408889634
OOB = 0x7f000000
NEG = 0xf149f2ca

def f2u(f): return struct.unpack('<I', struct.pack('<f', f))[0]

def scsel(a, dst, x, y):
    def lit(v): return isinstance(v, int) and not (-16 <= v <= 64)
    if lit(x) and lit(y):
        a(f's_mov_b32 {dst}, {y}')
        a(f's_cselect_b32 {dst}, {x}, {dst}')
    else:
        a(f's_cselect_b32 {dst}, {x}, {y}')

class Opt:
    stop_after = 5
    safe = False
    prof = 0
    cur = 0

def stamp(a, o, idx):
    if o.prof != o.cur: return
    assert 0 < idx < 10
    a(f'{"s_memrealtime" if getattr(o, "rt", False) else "s_memtime"} s[{80 + 2 * idx}:{81 + 2 * idx}]')

def stamps_out(a, o):
    if not o.prof: return
    a('s_waitcnt lgkmcnt(0)')
    a('s_lshl_b32 s73, s2, 3')
    a(f's_add_u32 s73, s73, {sr(S_WAVE)}')
    a('s_lshl_b32 s73, s73, 6')
    a(f's_add_u32 s73, s73, {WS_DBG + 0x80000}')
    a('v_mov_b32 v2, 0')
    a('s_mov_b64 exec, 1')
    for i in range(10):
        a(f'v_mov_b32 v1, s{80 + 2 * i}')
        a(f'buffer_store_dword v1, v2, {sr(S_WS, 4)}, s73 offen offset:{4 * i}')
    a('s_mov_b64 exec, -1')

class VQ:
    def __init__(self, a): self.a = a; self.q = []
    def add(self, tag, n=1): self.q += [tag] * n
    def wait(self, tag, extra=''):
        if tag not in self.q:
            if extra: self.a(f's_waitcnt {extra}')
            return
        idx = max(i for i, t in enumerate(self.q) if t == tag)
        n = len(self.q) - 1 - idx
        assert n <= 63
        self.a(f's_waitcnt vmcnt({n}) {extra}'.strip())
        del self.q[:idx + 1]
    def drain(self, extra=''):
        self.a(f's_waitcnt vmcnt(0) {extra}'.strip()); self.q = []

SPIN_MAX = 1 << 17
def poll(a, voffs, tmp, rng=False, red=None):
    top = a.newlabel('L_poll'); done = a.newlabel('L_polldone')
    a(f's_mov_b32 {sr(S_SPIN)}, 0')
    a.label(top)
    for vo, t in zip(voffs, tmp):
        a(f'buffer_load_dword {vr(t)}, {vr(vo)}, {sr(S_WS, 4)}, 0 offen sc1')
    a('s_waitcnt vmcnt(0)')
    if not rng:
        for k, t in enumerate(tmp):
            a(f'v_xor_b32 {vr(t)}, {sr(S_TAG)}, {vr(t)}')
            if k: a(f'v_or_b32 {vr(tmp[0])}, {vr(tmp[0])}, {vr(t)}')
        a(f'v_cmp_ne_u32 vcc, 0, {vr(tmp[0])}')
    else:
        for t in tmp:
            a(f'v_subrev_u32 {vr(t)}, {sr(S_TAG)}, {vr(t)}')
        if len(tmp) == 1:
            a(f'v_cmp_le_u32 vcc, 8, {vr(tmp[0])}')
        else:
            a(f'v_or_b32 {vr(red)}, {vr(tmp[0])}, {vr(tmp[1])}')
            for t in tmp[2:]:
                a(f'v_or_b32 {vr(red)}, {vr(red)}, {vr(t)}')
            a(f'v_cmp_le_u32 vcc, 8, {vr(red)}')
    a('s_cmp_eq_u64 vcc, 0')
    a(f's_cbranch_scc1 {done}')
    a(f's_add_u32 {sr(S_SPIN)}, {sr(S_SPIN)}, 1')
    a(f's_cmp_lt_u32 {sr(S_SPIN)}, {SPIN_MAX}')
    a(f's_cbranch_scc0 {done}')
    a('s_sleep 1')
    a(f's_branch {top}')
    a.label(done)

def dual(a, o, emit):
    if o.safe:
        emit(' sc1'); return
    l1 = a.newlabel('L_safe'); l2 = a.newlabel('L_join')
    a(f's_cmp_eq_u32 {sr(S_FAST)}, 0')
    a(f's_cbranch_scc1 {l1}')
    emit('')
    a(f's_branch {l2}')
    a.label(l1)
    emit(' sc1')
    a.label(l2)

def set_flag(a, o, soff_reg, val=None, mode='sc1', v1=1, v2=2):
    a(f'v_mov_b32 v{v1}, {sr(S_TAG if val is None else val)}')
    a(f'v_mov_b32 v{v2}, 0')
    a('s_mov_b64 exec, 1')
    if mode == 'sc1':
        a(f'buffer_store_dword v{v1}, v{v2}, {sr(S_WS, 4)}, {sr(soff_reg)} offen sc1')
    else:
        dual(a, o, lambda sc: a(f'buffer_store_dword v{v1}, v{v2}, {sr(S_WS, 4)}, {sr(soff_reg)} offen{sc}'))
    a('s_mov_b64 exec, -1')

def if_wave(a, w):
    lab = a.newlabel('L_nw')
    a(f's_cmp_lg_u32 {sr(S_WAVE)}, {w}')
    a(f's_cbranch_scc1 {lab}')
    return lab

def xg_reduce(a, acc, tmp, op):
    a(f'v_mov_b32 {vr(tmp)}, {vr(acc)}')
    a(f'v_permlane32_swap_b32 {vr(tmp)}, {vr(acc)}')
    a(f'{op} {vr(acc)}, {vr(acc)}, {vr(tmp)}')
    a(f'v_mov_b32 {vr(tmp)}, {vr(acc)}')
    a(f'v_permlane16_swap_b32 {vr(tmp)}, {vr(acc)}')
    a(f'{op} {vr(acc)}, {vr(acc)}, {vr(tmp)}')

def interleave(a, main, fill, start=0, per=1):
    fill = list(fill)
    for i, m in enumerate(main):
        a(m)
        if i >= start:
            for _ in range(per):
                if fill: a(fill.pop(0))
    for f in fill: a(f)

def poll_all_flt(a, vl, fl):
    top = a.newlabel('L_pollall'); done = a.newlabel('L_pollalldone')
    a(f's_mov_b32 {sr(S_SPIN)}, 0')
    a.label(top)
    for k in range(4):
        a(f's_mov_b32 {sr(T[0])}, {WS_FL + FLT + k * 1024}')
        a(f'buffer_load_dwordx4 {vr(fl + 4 * k, 4)}, {vr(vl)}, {sr(S_WS, 4)}, {sr(T[0])} offen sc1')
    a('s_waitcnt vmcnt(0)')
    for k in range(16): a(f'v_xor_b32 {vr(fl + k)}, {sr(S_TAG)}, {vr(fl + k)}')
    for k in range(1, 16): a(f'v_or_b32 {vr(fl)}, {vr(fl)}, {vr(fl + k)}')
    a(f'v_cmp_ne_u32 vcc, 0, {vr(fl)}')
    a('s_cmp_eq_u64 vcc, 0')
    a(f's_cbranch_scc1 {done}')
    a(f's_add_u32 {sr(S_SPIN)}, {sr(S_SPIN)}, 1')
    a(f's_cmp_lt_u32 {sr(S_SPIN)}, {SPIN_MAX}')
    a(f's_cbranch_scc0 {done}')
    a('s_sleep 2')
    a(f's_branch {top}')
    a.label(done)


def touch(a, srd, nlines_per_wave, ninstr, idx_sreg_setup, vt, vd, tmp):
    idx_sreg_setup(tmp)
    a(f's_mul_i32 {sr(tmp)}, {sr(tmp)}, {nlines_per_wave * 128}')
    a(f'v_lshlrev_b32 {vr(vt)}, 7, v0')
    per = nlines_per_wave // ninstr
    for i in range(ninstr):
        if per < 64:
            a(f's_mov_b32 exec_hi, {hex((1 << (per - 32)) - 1)}')
        a(f'buffer_load_dword {vr(vd + i)}, {vr(vt)}, {sr(srd, 4)}, {sr(tmp)} offen')
        if per < 64: a('s_mov_b64 exec, -1')
        if i + 1 < ninstr: a(f's_add_u32 {sr(tmp)}, {sr(tmp)}, {per * 128}')
```

```python
from base import *

S1_SLOT = 32768
S1_STATS = 162816
S1_CSX = 131072

def prologue(a, o):
    a.comment('---- prologue ----')
    a('s_cmp_ge_u32 s2, 256')
    a('s_cbranch_scc1 L_exit')
    if o.prof: a(('s_memrealtime' if getattr(o, 'rt', False) else 's_memtime') + ' s[80:81]')
    a('s_load_dwordx16 s[48:63], s[0:1], 0')
    a('s_load_dwordx4 s[64:67], s[0:1], 64')
    a('s_load_dwordx2 s[68:69], s[0:1], 80')
    a('v_lshrrev_b32 v1, 6, v0')
    a('v_and_b32 v0, 63, v0')
    a(f'v_readfirstlane_b32 {sr(S_WAVE)}, v1')
    a(f's_and_b32 {sr(S_TEAM)}, s2, 7')
    a(f's_getreg_b32 {sr(S_XCC)}, hwreg(HW_REG_XCC_ID, 0, 4)')
    a(f's_lshr_b32 {sr(S_MEM)}, s2, 3')
    a(f's_and_b32 {sr(S_LW)}, {sr(S_WAVE)}, 3')
    a(f's_lshl_b32 {sr(S_GW)}, {sr(S_MEM)}, 2')
    a(f's_add_u32 {sr(S_GW)}, {sr(S_GW)}, {sr(S_LW)}')
    a(f's_cmp_ge_u32 {sr(S_MEM)}, 15')
    a(f's_cselect_b32 {sr(S_RB)}, 1, 0')
    a(f's_cselect_b32 {sr(S_CB)}, 15, 0')
    a(f's_sub_u32 {sr(S_CB)}, {sr(S_MEM)}, {sr(S_CB)}')
    a(f's_cmp_ge_u32 {sr(S_MEM)}, 30')
    lab = a.newlabel('L_nospare')
    a(f's_cbranch_scc0 {lab}')
    a(f's_sub_u32 {sr(S_RB)}, {sr(S_MEM)}, 30')
    a(f's_mov_b32 {sr(S_CB)}, 15')
    a.label(lab)
    a(f's_lshl_b32 s73, {sr(S_TEAM)}, 1')
    a(f's_add_u32 {sr(S_RB)}, {sr(S_RB)}, s73')
    a('s_waitcnt lgkmcnt(0)')
    a(f's_load_dword {sr(S_EPOCH)}, s[68:69], {WS_FL + FLE}')
    def srd(d, p, size):
        a(f's_mov_b32 {sr(d)}, {sr(p)}')
        a(f's_and_b32 {sr(d + 1)}, {sr(p + 1)}, 0xffff')
        a(f's_mov_b32 {sr(d + 2)}, {size}')
        a(f's_mov_b32 {sr(d + 3)}, 0x00020000')
    srd(S_X, 48, 2048 * 640 * 2)
    srd(S_WQKV, 50, 640 * 1920 * 2)
    srd(S_WO, 52, 640 * 640 * 2)
    srd(S_W1, 56, 640 * 1536 * 2)
    srd(S_B1, 58, 1536 * 2)
    srd(S_W2, 60, 1536 * 640 * 2)
    srd(S_B2, 62, 640 * 2)
    srd(S_OUT, 64, 2048 * 640 * 2)
    srd(S_WS, 68, WS_SIZE)
    a(f's_mov_b32 {sr(S_ONES)}, 0x3f803f80')

def make_tag(a):
    a(f's_mul_i32 {sr(S_TAG)}, {sr(S_EPOCH)}, 0x9E3779B1')
    a(f's_add_u32 {sr(S_TAG)}, {sr(S_TAG)}, 1')

S1_RT = 132096

def row_stats(a, o, with_job=False):
    a.comment('LN1 row stats (+ retile job)')
    V = RegAlloc(200, 1)
    raw = V.alloc(10, 2); x = V.alloc(20); t0, t1, sm, m2 = [V.alloc() for _ in range(4)]; st = V.alloc(2, 2)
    a(f'v_lshrrev_b32 {vr(t0)}, 5, v0')
    a(f'v_mul_u32_u24 {vr(t0)}, 0x500, {vr(t0)}')
    a(f'v_and_b32 {vr(t1)}, 31, v0')
    a(f'v_lshl_add_u32 {vr(t0)}, {vr(t1)}, 3, {vr(t0)}')
    a(f's_lshl_b32 {sr(T[0])}, {sr(S_TEAM)}, 8')
    a(f's_lshl_b32 {sr(T[1])}, {sr(S_GW)}, 1')
    a(f's_add_u32 {sr(T[0])}, {sr(T[0])}, {sr(T[1])}')
    a(f's_mul_i32 {sr(T[1])}, {sr(T[0])}, 1280')
    for i in range(5):
        a(f'buffer_load_dwordx2 {vr(raw + 2 * i, 2)}, {vr(t0)}, {sr(S_X, 4)}, {sr(T[1])} offen offset:{i * 256}')
    a('s_waitcnt vmcnt(0)')
    for i in range(10):
        a(f'v_lshlrev_b32 {vr(x + 2 * i)}, 16, {vr(raw + i)}')
        a(f'v_and_b32 {vr(x + 2 * i + 1)}, 0xffff0000, {vr(raw + i)}')
    def red32(acc):
        for sh in (8, 4, 2, 1):
            a(f'v_add_f32_dpp {vr(acc)}, {vr(acc)}, {vr(acc)} row_ror:{sh} row_mask:0xf bank_mask:0xf')
        a(f'v_mov_b32 {vr(t0)}, {vr(acc)}')
        a(f'v_permlane16_swap_b32 {vr(t0)}, {vr(acc)}')
        a(f'v_add_f32 {vr(acc)}, {vr(acc)}, {vr(t0)}')
    a(f'v_add_f32 {vr(sm)}, {vr(x)}, {vr(x + 1)}')
    for i in range(2, 20): a(f'v_add_f32 {vr(sm)}, {vr(sm)}, {vr(x + i)}')
    red32(sm)
    a(f'v_mul_f32 {vr(sm)}, {f2u(1.0 / 640.0):#x}, {vr(sm)}')
    for i in range(20):
        a(f'v_sub_f32 {vr(x + i)}, {vr(x + i)}, {vr(sm)}')
        if i == 0: a(f'v_mul_f32 {vr(m2)}, {vr(x)}, {vr(x)}')
        else: a(f'v_fmac_f32 {vr(m2)}, {vr(x + i)}, {vr(x + i)}')
    red32(m2)
    a(f'v_mov_b32 {vr(t1)}, {f2u(1e-5):#x}')
    a(f'v_fmac_f32 {vr(t1)}, {f2u(1.0 / 640.0):#x}, {vr(m2)}')
    a(f'v_rsq_f32 {vr(st)}, {vr(t1)}')
    a(f'v_mul_f32 {vr(st + 1)}, {vr(sm)}, {vr(st)}')
    a(f'v_sub_f32 {vr(st + 1)}, 0, {vr(st + 1)}')
    a(f'v_lshrrev_b32 {vr(t0)}, 5, v0')
    a(f'v_lshlrev_b32 {vr(t0)}, 3, {vr(t0)}')
    a(f'v_and_b32 {vr(t1)}, 31, v0')
    a(f'v_mov_b32 {vr(sm)}, {OOB:#x}')
    a(f'v_cmp_eq_u32 vcc, 0, {vr(t1)}')
    a(f'v_cndmask_b32 {vr(t0)}, {vr(sm)}, {vr(t0)}, vcc')
    a(f's_lshl_b32 {sr(T[0])}, {sr(T[0])}, 3')
    a(f's_add_u32 {sr(T[0])}, {sr(T[0])}, {WS_ST1}')
    a(f'buffer_store_dwordx2 {vr(st, 2)}, {vr(t0)}, {sr(S_WS, 4)}, {sr(T[0])} offen sc1')

RT_S = (64, 65, 66, 67, 68, 69, 70)
def rt_job_issue(a, o, V, stage=S1_RT):
    S_S, S_C, S_D, S_NS, S_MG, S_BASE, S_PITCH = RT_S
    vo, vt, ad, vl = [V.alloc() for _ in range(4)]
    d = V.alloc(16, 4)
    a(f's_mov_b32 {sr(T[2])}, s2')
    a(f's_lshl_b32 {sr(T[2])}, {sr(T[2])}, 2')
    a(f's_add_u32 {sr(T[2])}, {sr(T[2])}, {sr(S_LW)}')
    a(f's_cmp_lt_u32 {sr(T[2])}, 480')
    for k in range(3):
        a(f's_cselect_b32 s{S_SRD2 + k}, {sr(S_W2 + k)}, {sr(S_W1 + k)}')
    a(f's_mov_b32 s{S_SRD2 + 3}, 0x00020000')
    a(f's_cselect_b32 {sr(S_D)}, 5, 3')
    a(f's_cselect_b32 {sr(S_NS)}, 48, 20')
    scsel(a, sr(S_MG), 205, 342)
    scsel(a, sr(S_BASE), WS_WT5, WS_WT4)
    scsel(a, sr(S_PITCH), 1280, 3072)
    scsel(a, sr(T[3]), 6554, 2731)
    a(f's_cselect_b32 {sr(T[4])}, 10, 24')
    scsel(a, sr(T[5]), 0, 480)
    a(f's_sub_u32 {sr(T[2])}, {sr(T[2])}, {sr(T[5])}')
    a(f's_mul_i32 {sr(S_S)}, {sr(T[2])}, {sr(T[3])}')
    a(f's_lshr_b32 {sr(S_S)}, {sr(S_S)}, 16')
    a(f's_mul_i32 {sr(T[4])}, {sr(S_S)}, {sr(T[4])}')
    a(f's_sub_u32 {sr(S_C)}, {sr(T[2])}, {sr(T[4])}')
    a(f's_cmp_ge_u32 {sr(T[2])}, 480')
    a(f's_cselect_b32 {sr(S_BASE)}, {OOB:#x}, {sr(S_BASE)}')
    a(f'v_lshrrev_b32 {vr(vt)}, 3, v0')
    a(f'v_mul_lo_u32 {vr(vt)}, {vr(vt)}, {sr(S_PITCH)}')
    a(f'v_and_b32 {vr(vo)}, 7, v0')
    a(f'v_lshl_add_u32 {vr(vo)}, {vr(vo)}, 4, {vr(vt)}')
    a(f's_lshl_b32 {sr(T[2])}, {sr(S_S)}, 5')
    a(f's_mul_i32 {sr(T[2])}, {sr(T[2])}, {sr(S_PITCH)}')
    a(f's_lshl_b32 {sr(T[3])}, {sr(S_C)}, 7')
    a(f's_add_u32 {sr(T[2])}, {sr(T[2])}, {sr(T[3])}')
    a(f's_lshl_b32 {sr(T[3])}, {sr(S_PITCH)}, 3')
    a(f's_lshl_b32 {sr(T[4])}, {sr(S_LW)}, 12')
    a(f's_add_u32 {sr(T[4])}, {sr(T[4])}, {stage}')
    for i in range(4):
        a(f's_add_u32 m0, {sr(T[4])}, {i * 1024}')
        a('s_nop 0')
        a(f'buffer_load_dwordx4 {vr(vo)}, {sr(S_SRD2, 4)}, {sr(T[2])} offen lds')
        if i < 3: a(f's_add_u32 {sr(T[2])}, {sr(T[2])}, {sr(T[3])}')
    a(f'v_lshrrev_b32 {vr(vt)}, 4, v0')
    a(f'v_lshlrev_b32 {vr(vt)}, 2, {vr(vt)}')
    a(f'v_bfe_u32 {vr(ad)}, v0, 2, 2')
    a(f'v_add_u32 {vr(vt)}, {vr(vt)}, {vr(ad)}')
    a(f'v_lshlrev_b32 {vr(vt)}, 7, {vr(vt)}')
    a(f'v_and_b32 {vr(ad)}, 3, v0')
    a(f'v_lshl_add_u32 {vr(vt)}, {vr(ad)}, 3, {vr(vt)}')
    a(f'v_add_u32 {vr(ad)}, {sr(T[4])}, {vr(vt)}')
    a(f'v_lshlrev_b32 {vr(vl)}, 4, v0')
    return (ad, vl, d)

def rt_job_finish(a, o, st, TT=None):
    ad, vl, d = st
    S_S, S_C, S_D, S_NS, S_MG, S_BASE, S_PITCH = RT_S
    for jj in range(4):
        a(f'ds_read_b64_tr_b16 {vr(d + 4 * jj, 2)}, {vr(ad)} offset:{jj * 32}')
        a(f'ds_read_b64_tr_b16 {vr(d + 4 * jj + 2, 2)}, {vr(ad)} offset:{jj * 32 + 16 * 128}')
    a('s_waitcnt lgkmcnt(0)')
    for jj in range(4):
        a(f's_lshl_b32 {sr(T[2])}, {sr(S_C)}, 2')
        a(f's_add_u32 {sr(T[2])}, {sr(T[2])}, {jj}')
        a(f's_mul_i32 {sr(T[3])}, {sr(T[2])}, {sr(S_MG)}')
        a(f's_lshr_b32 {sr(T[3])}, {sr(T[3])}, 10')
        a(f's_mul_i32 {sr(T[4])}, {sr(T[3])}, {sr(S_D)}')
        a(f's_sub_u32 {sr(T[4])}, {sr(T[2])}, {sr(T[4])}')
        a(f's_mul_i32 {sr(T[3])}, {sr(T[3])}, {sr(S_NS)}')
        a(f's_add_u32 {sr(T[3])}, {sr(T[3])}, {sr(S_S)}')
        a(f's_mul_i32 {sr(T[3])}, {sr(T[3])}, {sr(S_D)}')
        a(f's_add_u32 {sr(T[3])}, {sr(T[3])}, {sr(T[4])}')
        a(f's_lshl_b32 {sr(T[3])}, {sr(T[3])}, 10')
        a(f's_add_u32 {sr(T[3])}, {sr(T[3])}, {sr(S_BASE)}')
        a(f'buffer_store_dwordx4 {vr(d + 4 * jj, 4)}, {vr(vl)}, {sr(S_WS, 4)}, {sr(T[3])} offen sc1')


def fls_flag(a, o, v1=1, v2=2):
    a(f's_lshl_b32 {sr(T[6])}, {sr(S_TEAM)}, 7')
    a(f's_add_u32 {sr(T[6])}, {sr(T[6])}, {sr(S_GW)}')
    a(f's_lshl_b32 {sr(T[6])}, {sr(T[6])}, 2')
    a(f's_add_u32 {sr(T[6])}, {sr(T[6])}, {WS_FL + FLS}')
    set_flag(a, o, T[6], v1=v1, v2=v2)

def s1_loader(a, o):
    a.comment('---- S1 loader ----')
    V = RegAlloc(256, 1)
    vA = [V.alloc() for _ in range(2)]
    vW = [V.alloc() for _ in range(2)]
    t0, t1, t2, t3 = [V.alloc() for _ in range(4)]
    a(f'v_lshrrev_b32 {vr(t0)}, 3, v0')
    a(f'v_mul_u32_u24 {vr(t0)}, 0x500, {vr(t0)}')
    a(f'v_lshrrev_b32 {vr(t1)}, 4, v0')
    a(f'v_and_b32 {vr(t2)}, 7, v0')
    for par in range(2):
        a(f'v_add_u32 {vr(t3)}, {4 * par}, {vr(t1)}')
        a(f'v_xor_b32 {vr(t3)}, {vr(t2)}, {vr(t3)}')
        a(f'v_lshl_add_u32 {vr(vA[par])}, {vr(t3)}, 4, {vr(t0)}')
    a(f'v_mul_u32_u24 {vr(t0)}, 0xf00, {vr(t1)}')
    a(f'v_and_b32 {vr(t2)}, 15, v0')
    for v in range(2):
        a(f'v_or_b32 {vr(t3)}, {4 * v}, {vr(t1)}')
        a(f'v_lshlrev_b32 {vr(t3)}, 1, {vr(t3)}')
        a(f'v_xor_b32 {vr(t3)}, {vr(t2)}, {vr(t3)}')
        a(f'v_lshl_add_u32 {vr(vW[v])}, {vr(t3)}, 4, {vr(t0)}')
    sA, sW, sLA, sLW, tmp = T[0], T[1], T[2], T[3], T[4]
    S_KA, S_KW, sAc, sWc = 60, 61, 62, 63
    a(f's_lshl_b32 {sr(sA)}, {sr(S_RB)}, 7')
    a(f's_lshl_b32 {sr(tmp)}, {sr(S_LW)}, 5')
    a(f's_add_u32 {sr(sA)}, {sr(sA)}, {sr(tmp)}')
    a(f's_mul_i32 {sr(sA)}, {sr(sA)}, 1280')
    a(f's_mul_i32 {sr(sW)}, {sr(S_LW)}, {16 * 3840}')
    a(f's_lshl_b32 {sr(tmp)}, {sr(S_CB)}, 8')
    a(f's_add_u32 {sr(sW)}, {sr(sW)}, {sr(tmp)}')
    a(f's_lshl_b32 {sr(sLA)}, {sr(S_LW)}, 12')
    a(f's_add_u32 {sr(sLW)}, {sr(sLA)}, 16384')
    a(f's_mul_i32 {sr(S_KA)}, {sr(S_TEAM)}, 10')
    a(f's_lshr_b32 {sr(S_KA)}, {sr(S_KA)}, 3')
    a(f's_mul_i32 {sr(S_KW)}, {sr(S_KA)}, 245760')
    a(f's_lshl_b32 {sr(S_KA)}, {sr(S_KA)}, 7')
    q = VQ(a)
    def issue(c):
        slot = (c % 4) * S1_SLOT
        a(f's_add_u32 {sr(sAc)}, {sr(sA)}, {sr(S_KA)}')
        a(f's_add_u32 {sr(sWc)}, {sr(sW)}, {sr(S_KW)}')
        for i in range(4):
            a(f's_add_u32 m0, {sr(sLA)}, {slot + i * 1024}')
            a(f's_add_u32 {sr(tmp)}, {sr(sAc)}, {i * 8 * 1280}')
            a(f'buffer_load_dwordx4 {vr(vA[i & 1])}, {sr(S_X, 4)}, {sr(tmp)} offen lds')
        for i in range(4):
            a(f's_add_u32 m0, {sr(sLW)}, {slot + i * 1024}')
            a(f's_add_u32 {sr(tmp)}, {sr(sWc)}, {4 * i * 3840}')
            a(f'buffer_load_dwordx4 {vr(vW[i >> 1])}, {sr(S_WQKV, 4)}, {sr(tmp)} offen lds')
        a(f's_add_u32 {sr(S_KA)}, {sr(S_KA)}, 128')
        a(f's_add_u32 {sr(S_KW)}, {sr(S_KW)}, 245760')
        a(f's_cmp_eq_u32 {sr(S_KA)}, 1280')
        a(f's_cselect_b32 {sr(S_KA)}, 0, {sr(S_KA)}')
        a(f's_cselect_b32 {sr(S_KW)}, 0, {sr(S_KW)}')
        q.add(('c', c), 8)
    stamp(a, o, 1)
    issue(0); issue(1)
    stamp(a, o, 2)
    for c in range(10):
        q.wait(('c', c))
        a('s_barrier')
        if c in (0, 1, 3, 5, 9): stamp(a, o, {0: 3, 1: 4, 3: 5, 5: 6, 9: 7}[c])
        if c == 0: issue(2); issue(3)
        if 1 <= c <= 6: issue(c + 3)
        if c == 8 and o.touchwo:
            touch(a, S_WO, 54, 1, lambda d: a(f's_mov_b32 {sr(d)}, {sr(S_GW)}'), t2, 250, T[5])
        if c == 7:
            a('s_waitcnt lgkmcnt(0)')
            make_tag(a)
            lab = if_wave(a, 7)
            flx_flag(a, o)
            a.label(lab)
            lab = if_wave(a, 4)
            a(f's_and_b32 {sr(tmp)}, {sr(S_RB)}, 1')
            a(f's_lshl_b32 {sr(tmp)}, {sr(tmp)}, 6')
            a(f's_lshl_b32 {sr(sAc)}, {sr(S_TEAM)}, 7')
            a(f's_add_u32 {sr(tmp)}, {sr(tmp)}, {sr(sAc)}')
            a(f's_lshl_b32 {sr(tmp)}, {sr(tmp)}, 2')
            a(f's_add_u32 {sr(tmp)}, {sr(tmp)}, {WS_FL + FLS}')
            a(f'v_lshl_add_u32 {vr(t0)}, v0, 2, {sr(tmp)}')
            poll(a, [t0], [t1])
            a(f'v_lshlrev_b32 {vr(t0)}, 4, v0')
            a(f's_lshl_b32 {sr(tmp)}, {sr(S_RB)}, 10')
            a(f's_add_u32 {sr(tmp)}, {sr(tmp)}, {WS_ST1}')
            a(f's_mov_b32 m0, {S1_STATS}')
            a('s_nop 0')
            a(f'buffer_load_dwordx4 {vr(t0)}, {sr(S_WS, 4)}, {sr(tmp)} offen sc1 lds')
            a.label(lab)
    q.drain()
    a('s_barrier')
    stamp(a, o, 8)
    a('s_barrier')
    stamp(a, o, 9)

RT_N = 4
def s1_spare(a, o):
    a.comment('---- S1 spare WG: retile w1 ----')
    V = RegAlloc(200, 40)
    S_SW, S_J, S_S, S_C = 60, 61, 62, 63
    vo, tA, tB, vl, ad = [V.alloc() for _ in range(5)]
    d = [V.alloc(16, 4) for _ in range(2)]
    a(f's_lshl_b32 {sr(S_SW)}, {sr(S_RB)}, 3')
    a(f's_add_u32 {sr(S_SW)}, {sr(S_SW)}, {sr(S_WAVE)}')
    a(f'v_lshrrev_b32 {vr(tA)}, 3, v0')
    a(f'v_mul_u32_u24 {vr(tA)}, 3072, {vr(tA)}')
    a(f'v_and_b32 {vr(vo)}, 7, v0')
    a(f'v_lshl_add_u32 {vr(vo)}, {vr(vo)}, 4, {vr(tA)}')
    a(f'v_lshlrev_b32 {vr(vl)}, 4, v0')
    a(f's_lshl_b32 {sr(T[0])}, {sr(S_WAVE)}, 14')
    a(f'v_lshrrev_b32 {vr(tA)}, 4, v0')
    a(f'v_lshlrev_b32 {vr(tA)}, 2, {vr(tA)}')
    a(f'v_bfe_u32 {vr(tB)}, v0, 2, 2')
    a(f'v_add_u32 {vr(tA)}, {vr(tA)}, {vr(tB)}')
    a(f'v_lshlrev_b32 {vr(tA)}, 7, {vr(tA)}')
    a(f'v_and_b32 {vr(tB)}, 3, v0')
    a(f'v_lshl_add_u32 {vr(tA)}, {vr(tB)}, 3, {vr(tA)}')
    a(f'v_add_u32 {vr(ad)}, {sr(T[0])}, {vr(tA)}')
    q = VQ(a)
    def job(n):
        a(f's_add_u32 {sr(S_J)}, {sr(S_SW)}, {128 * n}')
        a(f's_mul_i32 {sr(S_S)}, {sr(S_J)}, 2731')
        a(f's_lshr_b32 {sr(S_S)}, {sr(S_S)}, 16')
        a(f's_mul_i32 {sr(T[1])}, {sr(S_S)}, 24')
        a(f's_sub_u32 {sr(S_C)}, {sr(S_J)}, {sr(T[1])}')
    def issue(n):
        job(n)
        a(f's_mul_i32 {sr(T[1])}, {sr(S_S)}, {32 * 3072}')
        a(f's_lshl_b32 {sr(T[2])}, {sr(S_C)}, 7')
        a(f's_add_u32 {sr(T[1])}, {sr(T[1])}, {sr(T[2])}')
        for i in range(4):
            a(f's_add_u32 m0, {sr(T[0])}, {n * 4096 + i * 1024}')
            a(f's_add_u32 {sr(T[2])}, {sr(T[1])}, {i * 8 * 3072}')
            a(f'buffer_load_dwordx4 {vr(vo)}, {sr(S_W1, 4)}, {sr(T[2])} offen lds')
        q.add(('j', n), 4)
    def process(n):
        job(n)
        dd = d[n % 2]
        for jj in range(4):
            a(f'ds_read_b64_tr_b16 {vr(dd + 4 * jj, 2)}, {vr(ad)} offset:{n * 4096 + jj * 32}')
            a(f'ds_read_b64_tr_b16 {vr(dd + 4 * jj + 2, 2)}, {vr(ad)} offset:{n * 4096 + jj * 32 + 16 * 128}')
        a(f's_mov_b32 {sr(T[5])}, {WS_WT4}')
        a(f's_cmp_ge_u32 {sr(S_J)}, 480')
        a(f's_cselect_b32 {sr(T[5])}, {OOB:#x}, {sr(T[5])}')
        a('s_waitcnt lgkmcnt(0)')
        for jj in range(4):
            a(f's_lshl_b32 {sr(T[6])}, {sr(S_C)}, 2')
            a(f's_add_u32 {sr(T[6])}, {sr(T[6])}, {jj}')
            a(f's_mul_i32 {sr(T[3])}, {sr(T[6])}, 342')
            a(f's_lshr_b32 {sr(T[3])}, {sr(T[3])}, 10')
            a(f's_mul_i32 {sr(T[4])}, {sr(T[3])}, 3')
            a(f's_sub_u32 {sr(T[4])}, {sr(T[6])}, {sr(T[4])}')
            a(f's_mul_i32 {sr(T[3])}, {sr(T[3])}, 20')
            a(f's_add_u32 {sr(T[3])}, {sr(T[3])}, {sr(S_S)}')
            a(f's_mul_i32 {sr(T[3])}, {sr(T[3])}, 3')
            a(f's_add_u32 {sr(T[3])}, {sr(T[3])}, {sr(T[4])}')
            a(f's_lshl_b32 {sr(T[3])}, {sr(T[3])}, 10')
            a(f's_add_u32 {sr(T[3])}, {sr(T[3])}, {sr(T[5])}')
            a(f'buffer_store_dwordx4 {vr(dd + 4 * jj, 4)}, {vr(vl)}, {sr(S_WS, 4)}, {sr(T[3])} offen sc1')
        q.add(('s', n), 4)
    for n in range(RT_N): issue(n)
    a('s_waitcnt lgkmcnt(0)')
    make_tag(a)
    lab = if_wave(a, 7)
    fl1_flag(a, o)
    flx_flag(a, o)
    a.label(lab)
    for n in range(RT_N):
        q.wait(('j', n))
        process(n)
        if n == 0:
            lab = a.newlabel('L_spfls')
            a(f's_cmp_ge_u32 {sr(S_WAVE)}, 4')
            a(f's_cbranch_scc1 {lab}')
            fls_flag(a, o, v1=1, v2=2)
            a.label(lab)
    q.drain()
    a('s_barrier')
    lab = if_wave(a, 0)
    a(f's_lshl_b32 {sr(T[6])}, {sr(S_RB)}, 2')
    a(f's_add_u32 {sr(T[6])}, {sr(T[6])}, {WS_FL + FLR}')
    set_flag(a, o, T[6])
    a.label(lab)

def flx_flag(a, o):
    a(f's_lshl_b32 {sr(T[6])}, {sr(S_TEAM)}, 5')
    a(f's_add_u32 {sr(T[6])}, {sr(T[6])}, {sr(S_MEM)}')
    a(f's_lshl_b32 {sr(T[6])}, {sr(T[6])}, 2')
    a(f's_add_u32 {sr(T[6])}, {sr(T[6])}, {WS_FL + FLX}')
    a(f's_add_u32 {sr(T[7])}, {sr(S_TAG)}, {sr(S_XCC)}')
    set_flag(a, o, T[6], val=T[7], v1=5, v2=6)

def fl1_flag(a, o):
    a(f's_lshl_b32 {sr(T[6])}, {sr(S_RB)}, 4')
    a(f's_add_u32 {sr(T[6])}, {sr(T[6])}, {sr(S_CB)}')
    a(f's_lshl_b32 {sr(T[6])}, {sr(T[6])}, 2')
    a(f's_add_u32 {sr(T[6])}, {sr(T[6])}, {WS_FL + FL1}')
    a(f's_add_u32 {sr(T[7])}, {sr(S_TAG)}, {sr(S_XCC)}')
    set_flag(a, o, T[6], val=T[7])

def s1_compute(a, o, vtype):
    a.comment(f'---- S1 compute (vtype={vtype}) ----')
    V = RegAlloc(256, 1)
    acc = V.alloc(64, 4)
    cs = V.alloc(16, 4)
    ones = V.alloc(4, 4)
    fX = [V.alloc(16, 4) for _ in range(2)]
    fW = [V.alloc(16, 4) for _ in range(2)]
    aad = [[V.alloc() for _ in range(2)] for _ in range(2)]
    wad = [[V.alloc() for _ in range(4)] for _ in range(2)]
    t0, t1, t2, t3, t4 = [V.alloc() for _ in range(5)]
    swm, swn = T[0], T[1]
    snt = [60, 61, 62, 63]
    a(f's_lshr_b32 {sr(swm)}, {sr(S_WAVE)}, 1')
    a(f's_and_b32 {sr(swn)}, {sr(S_WAVE)}, 1')
    for k in range(4):
        a(f's_lshl_b32 {sr(snt[k])}, {sr(swm)}, 1')
        a(f's_add_u32 {sr(snt[k])}, {sr(snt[k])}, {k}')
        a(f's_and_b32 {sr(snt[k])}, {sr(snt[k])}, 3')
    a('v_and_b32 %s, 15, v0' % vr(t0))
    a('v_lshrrev_b32 %s, 4, v0' % vr(t1))
    a('v_bfe_u32 %s, v0, 1, 3' % vr(t2))
    a(f's_lshl_b32 {sr(T[2])}, {sr(swm)}, 13')
    a(f'v_lshl_add_u32 {vr(t3)}, {vr(t0)}, 7, {sr(T[2])}')
    for ks in range(2):
        a(f'v_add_u32 {vr(t4)}, {4 * ks}, {vr(t1)}')
        a(f'v_xor_b32 {vr(t4)}, {vr(t4)}, {vr(t2)}')
        a(f'v_lshl_add_u32 {vr(aad[0][ks])}, {vr(t4)}, 4, {vr(t3)}')
        a(f'v_add_u32 {vr(aad[1][ks])}, 0x10000, {vr(aad[0][ks])}')
    a(f'v_bfe_u32 {vr(t2)}, v0, 2, 2')
    a(f'v_lshl_add_u32 {vr(t3)}, {vr(t1)}, 3, {vr(t2)}')
    a(f'v_lshlrev_b32 {vr(t3)}, 8, {vr(t3)}')
    a(f'v_and_b32 {vr(t4)}, 1, v0')
    a(f'v_lshl_add_u32 {vr(t3)}, {vr(t4)}, 3, {vr(t3)}')
    a(f'v_add_u32 {vr(t3)}, 0x4000, {vr(t3)}')
    a(f'v_and_b32 {vr(t4)}, 1, {vr(t1)}')
    a(f'v_lshl_or_b32 {vr(t2)}, {vr(t4)}, 2, {vr(t2)}')
    a(f'v_lshlrev_b32 {vr(t2)}, 1, {vr(t2)}')
    a(f'v_bfe_u32 {vr(t4)}, v0, 1, 1')
    a(f's_lshl_b32 {sr(T[2])}, {sr(swn)}, 3')
    a(f'v_add_u32 {vr(t4)}, {sr(T[2])}, {vr(t4)}')
    for nt in range(4):
        a(f's_lshl_b32 {sr(T[3])}, {sr(snt[nt])}, 1')
        a(f'v_add_u32 {vr(wad[0][nt])}, {sr(T[3])}, {vr(t4)}')
        a(f'v_xor_b32 {vr(wad[0][nt])}, {vr(wad[0][nt])}, {vr(t2)}')
        a(f'v_lshl_add_u32 {vr(wad[0][nt])}, {vr(wad[0][nt])}, 4, {vr(t3)}')
        a(f'v_add_u32 {vr(wad[1][nt])}, 0x10000, {vr(wad[0][nt])}')
    for i in range(4):
        a(f'v_mov_b32 {vr(ones + i)}, {sr(S_ONES)}')
    def reads(t):
        c, ks = t // 2, t % 2
        slot = c % 4
        half, off = slot // 2, (slot % 2) * S1_SLOT
        s = t % 2
        L = []
        for mt in range(4):
            L.append(f'ds_read_b128 {vr(fX[s] + 4 * mt, 4)}, {vr(aad[half][ks])} offset:{off + mt * 2048}')
        for nt in range(4):
            L.append(f'ds_read_b64_tr_b16 {vr(fW[s] + 4 * nt, 2)}, {vr(wad[half][nt])} offset:{off + ks * 8192}')
            L.append(f'ds_read_b64_tr_b16 {vr(fW[s] + 4 * nt + 2, 2)}, {vr(wad[half][nt])} offset:{off + ks * 8192 + 1024}')
        return L
    def mfmas(t):
        s = t % 2
        L = []
        first = (t == 0)
        for nt in range(4):
            for mt in range(4):
                d = vr(acc + (mt * 4 + nt) * 4, 4)
                X, W = vr(fX[s] + 4 * mt, 4), vr(fW[s] + 4 * nt, 4)
                A, B = (X, W) if vtype else (W, X)
                L.append(f'v_mfma_f32_16x16x32_bf16 {d}, {A}, {B}, {"0" if first else d}')
            if nt < 2:
                d = vr(cs + 4 * nt, 4)
                W = vr(fW[s] + 4 * nt, 4); O = vr(ones, 4)
                A, B = (O, W) if vtype else (W, O)
                L.append(f'v_mfma_f32_16x16x32_bf16 {d}, {A}, {B}, {"0" if first else d}')
        return L
    stamp(a, o, 2)
    a('s_barrier')
    stamp(a, o, 3)
    for r in reads(0): a(r)
    for t in range(20):
        a('s_waitcnt lgkmcnt(0)')
        if t == 0: make_tag(a)
        R = []
        if t + 1 < 20:
            if (t + 1) % 2 == 0:
                a('s_barrier')
                c1 = (t + 1) // 2
                if c1 in (1, 3, 5, 9): stamp(a, o, {1: 4, 3: 5, 5: 6, 9: 7}[c1])
            R = reads(t + 1)
        if t == 6:
            a('s_waitcnt vmcnt(0)')
            fls_flag(a, o, v1=t0, v2=t1)
        interleave(a, mfmas(t), R)
    a(f's_lshl_b32 {sr(T[2])}, {sr(swn)}, 8')
    a(f's_add_u32 {sr(T[2])}, {sr(T[2])}, {S1_CSX}')
    csad = V.alloc()
    if not vtype:
        a(f'v_lshrrev_b32 {vr(t1)}, 4, v0')
        a(f'v_lshl_add_u32 {vr(csad)}, {vr(t1)}, 4, {sr(T[2])}')
    else:
        a(f'v_and_b32 {vr(t1)}, 15, v0')
        a(f'v_lshl_add_u32 {vr(csad)}, {vr(t1)}, 2, {sr(T[2])}')
    csa = V.alloc(4)
    for nt in range(4):
        a(f's_lshl_b32 {sr(T[3])}, {sr(snt[nt])}, 6')
        a(f'v_add_u32 {vr(csa + nt)}, {sr(T[3])}, {vr(csad)}')
    for nt in range(2):
        if not vtype: a(f'ds_write_b128 {vr(csa + nt)}, {vr(cs + 4 * nt, 4)}')
        else: a(f'ds_write_b32 {vr(csa + nt)}, {vr(cs + 4 * nt)}')
    a('s_waitcnt lgkmcnt(0)')
    a('s_barrier')
    stamp(a, o, 8)
    for nt in range(2, 4):
        if not vtype: a(f'ds_read_b128 {vr(cs + 4 * nt, 4)}, {vr(csa + nt)}')
        else: a(f'ds_read_b32 {vr(cs + 4 * nt)}, {vr(csa + nt)}')
    stt = V.alloc(32, 4)
    sad = V.alloc(4)
    if not vtype:
        a(f'v_and_b32 {vr(t0)}, 15, v0')
        a(f's_lshl_b32 {sr(T[2])}, {sr(swm)}, 9')
        a(f's_add_u32 {sr(T[2])}, {sr(T[2])}, {S1_STATS}')
        a(f'v_lshl_add_u32 {vr(t0)}, {vr(t0)}, 3, {sr(T[2])}')
        for mt in range(4):
            a(f'ds_read_b64 {vr(stt + 2 * mt, 2)}, {vr(t0)} offset:{mt * 128}')
        a(f's_cmp_lt_u32 {sr(S_CB)}, 5')
        a(f's_cselect_b32 {sr(T[3])}, {f2u(QSCALE):#x}, 1.0')
        a(f's_lshl_b32 {sr(T[2])}, {sr(S_CB)}, 5')
        a(f's_lshl_b32 {sr(T[4])}, {sr(swn)}, 4')
        a(f's_add_u32 {sr(T[2])}, {sr(T[2])}, {sr(T[4])}')
        a(f'v_lshrrev_b32 {vr(t1)}, 4, v0')
        a(f'v_add_u32 {vr(t1)}, {sr(T[2])}, {vr(t1)}')
        a(f'v_and_b32 {vr(t0)}, 15, v0')
        a(f'v_lshlrev_b32 {vr(t0)}, 3, {vr(t0)}')
        a(f's_mov_b32 {sr(T[4])}, {HEADB}')
        for nt in range(4):
            a(f's_lshl_b32 {sr(T[5])}, {sr(snt[nt])}, 2')
            a(f'v_add_u32 {vr(t2)}, {sr(T[5])}, {vr(t1)}')
            a(f'v_mul_u32_u24 {vr(t3)}, 205, {vr(t2)}')
            a(f'v_lshrrev_b32 {vr(t3)}, 10, {vr(t3)}')
            a(f'v_mul_u32_u24 {vr(t4)}, 5, {vr(t3)}')
            a(f'v_sub_u32 {vr(t2)}, {vr(t2)}, {vr(t4)}')
            a(f'v_lshl_add_u32 {vr(t2)}, {vr(t2)}, 7, {vr(t0)}')
            a(f'v_mad_u32_u24 {vr(sad + nt)}, {vr(t3)}, {sr(T[4])}, {vr(t2)}')
        a(f's_lshl_b32 {sr(T[2])}, {sr(S_RB)}, 3')
        a(f's_lshl_b32 {sr(T[4])}, {sr(swm)}, 2')
        a(f's_add_u32 {sr(T[2])}, {sr(T[2])}, {sr(T[4])}')
        a(f's_mul_i32 {sr(T[2])}, {sr(T[2])}, 640')
        a(f's_add_u32 {sr(T[2])}, {sr(T[2])}, {WS_QK}')
        a('s_waitcnt lgkmcnt(0)')
        for mt in range(4):
            a(f'v_mul_f32 {vr(stt + 2 * mt)}, {sr(T[3])}, {vr(stt + 2 * mt)}')
            a(f'v_mul_f32 {vr(stt + 2 * mt + 1)}, {sr(T[3])}, {vr(stt + 2 * mt + 1)}')
        pk = V.alloc(8, 2)
        k = 0
        for nt in range(4):
            for mt in range(4):
                d = acc + (mt * 4 + nt) * 4
                for r in range(4):
                    a(f'v_mul_f32 {vr(d + r)}, {vr(d + r)}, {vr(stt + 2 * mt)}')
                for r in range(4):
                    a(f'v_fmac_f32 {vr(d + r)}, {vr(cs + 4 * nt + r)}, {vr(stt + 2 * mt + 1)}')
                p = pk + 2 * (k % 4); k += 1
                a(f'v_cvt_pk_bf16_f32 {vr(p)}, {vr(d)}, {vr(d + 1)}')
                a(f'v_cvt_pk_bf16_f32 {vr(p + 1)}, {vr(d + 2)}, {vr(d + 3)}')
                a(f'buffer_store_dwordx2 {vr(p, 2)}, {vr(sad + nt)}, {sr(S_WS, 4)}, {sr(T[2])} offen offset:{mt * 640} sc1')
    else:
        a(f'v_lshrrev_b32 {vr(t1)}, 4, v0')
        a(f's_lshl_b32 {sr(T[2])}, {sr(swm)}, 9')
        a(f's_add_u32 {sr(T[2])}, {sr(T[2])}, {S1_STATS}')
        a(f'v_lshl_add_u32 {vr(t0)}, {vr(t1)}, 5, {sr(T[2])}')
        for mt in range(4):
            a(f'ds_read_b128 {vr(stt + 8 * mt, 4)}, {vr(t0)} offset:{mt * 128}')
            a(f'ds_read_b128 {vr(stt + 8 * mt + 4, 4)}, {vr(t0)} offset:{mt * 128 + 16}')
        a(f's_sub_u32 {sr(T[2])}, {sr(S_CB)}, 10')
        a(f's_lshl_b32 {sr(T[2])}, {sr(T[2])}, 7')
        a(f's_lshl_b32 {sr(T[4])}, {sr(swn)}, 6')
        a(f's_add_u32 {sr(T[2])}, {sr(T[2])}, {sr(T[4])}')
        a(f'v_and_b32 {vr(t0)}, 15, v0')
        a(f'v_add_u32 {vr(t0)}, {sr(T[2])}, {vr(t0)}')
        a(f's_mov_b32 {sr(T[4])}, {HEADB}')
        tA = V.alloc(); tB = V.alloc()
        for nt in range(4):
            a(f's_lshl_b32 {sr(T[5])}, {sr(snt[nt])}, 4')
            a(f'v_add_u32 {vr(t2)}, {sr(T[5])}, {vr(t0)}')
            a(f'v_mul_u32_u24 {vr(t3)}, 3277, {vr(t2)}')
            a(f'v_lshrrev_b32 {vr(t3)}, 16, {vr(t3)}')
            a(f'v_mul_u32_u24 {vr(t4)}, 20, {vr(t3)}')
            a(f'v_sub_u32 {vr(t2)}, {vr(t2)}, {vr(t4)}')
            a(f'v_lshlrev_b32 {vr(tA)}, 8, {vr(t1)}')
            a(f'v_lshlrev_b32 {vr(tB)}, 6, {vr(t1)}')
            a(f'v_add_u32 {vr(tB)}, 768, {vr(tB)}')
            a(f'v_cmp_gt_u32 vcc, 16, {vr(t2)}')
            a(f'v_cndmask_b32 {vr(tA)}, {vr(tB)}, {vr(tA)}, vcc')
            a(f'v_lshl_add_u32 {vr(tA)}, {vr(t2)}, 4, {vr(tA)}')
            a(f'v_mad_u32_u24 {vr(sad + nt)}, {vr(t3)}, {sr(T[4])}, {vr(tA)}')
        a(f's_lshl_b32 {sr(T[2])}, {sr(S_RB)}, 2')
        a(f's_lshl_b32 {sr(T[4])}, {sr(swm)}, 1')
        a(f's_add_u32 {sr(T[2])}, {sr(T[2])}, {sr(T[4])}')
        a(f's_mul_i32 {sr(T[2])}, {sr(T[2])}, 1280')
        a(f's_add_u32 {sr(T[2])}, {sr(T[2])}, {WS_VF}')
        a('s_waitcnt lgkmcnt(0)')
        pk = V.alloc(8, 4)
        k = 0
        for nt in range(4):
            for i in range(2):
                p = pk + 4 * (k % 2); k += 1
                for hm in range(2):
                    mt = 2 * i + hm
                    d = acc + (mt * 4 + nt) * 4
                    for r in range(4):
                        a(f'v_mul_f32 {vr(d + r)}, {vr(d + r)}, {vr(stt + 8 * mt + 2 * r)}')
                    for r in range(4):
                        a(f'v_fmac_f32 {vr(d + r)}, {vr(cs + 4 * nt)}, {vr(stt + 8 * mt + 2 * r + 1)}')
                    a(f'v_cvt_pk_bf16_f32 {vr(p + 2 * hm)}, {vr(d)}, {vr(d + 1)}')
                    a(f'v_cvt_pk_bf16_f32 {vr(p + 2 * hm + 1)}, {vr(d + 2)}, {vr(d + 3)}')
                a(f'buffer_store_dwordx4 {vr(p, 4)}, {vr(sad + nt)}, {sr(S_WS, 4)}, {sr(T[2])} offen offset:{i * 1280} sc1')
    stamp(a, o, 1)
    a('s_waitcnt vmcnt(0)')
    a('s_barrier')
    stamp(a, o, 9)

def s1(a, o):
    o.cur = 1
    a(f's_cmp_ge_u32 {sr(S_WAVE)}, 4')
    a('s_cbranch_scc1 L_s1_l')
    a(f's_cmp_eq_u32 {sr(S_CB)}, 15')
    a('s_cbranch_scc1 L_s1_spare_c')
    row_stats(a, o)
    a(f's_cmp_ge_u32 {sr(S_CB)}, 10')
    a('s_cbranch_scc1 L_s1_v')
    s1_compute(a, o, False)
    a('s_branch L_s1_done')
    a.label('L_s1_v')
    s1_compute(a, o, True)
    a('s_branch L_s1_done')
    a.label('L_s1_l')
    a(f's_cmp_eq_u32 {sr(S_CB)}, 15')
    a('s_cbranch_scc1 L_s1_spare')
    s1_loader(a, o)
    a('s_branch L_s1_done')
    a.label('L_s1_spare_c')
    row_stats(a, o)
    a.label('L_s1_spare')
    s1_spare(a, o)
    a('s_branch L_s1_end')
    a.label('L_s1_done')
    lab = if_wave(a, 0)
    fl1_flag(a, o)
    a.label(lab)
    a.label('L_s1_end')
```

```python
from base import *

S_RB2, S_P = 43, 44
S2_DEC = 0
W3_BASE = 61440

def s2_roles(a):
    a(f's_lshr_b32 {sr(T[0])}, {sr(S_MEM)}, 4')
    a(f's_lshl_b32 {sr(S_RB2)}, {sr(S_TEAM)}, 1')
    a(f's_add_u32 {sr(S_RB2)}, {sr(S_RB2)}, {sr(T[0])}')
    a(f's_and_b32 {sr(S_P)}, {sr(S_MEM)}, 15')
    a(f's_lshr_b32 {sr(T[0])}, {sr(S_MEM)}, 3')
    a(f's_lshl_b32 {sr(T[0])}, {sr(T[0])}, 6')
    a(f's_lshl_b32 {sr(S_R0)}, {sr(S_TEAM)}, 8')
    a(f's_add_u32 {sr(S_R0)}, {sr(S_R0)}, {sr(T[0])}')
    a(f's_and_b32 {sr(S_CI)}, {sr(S_MEM)}, 7')

def nat_addr(a, base_v, pitch, coef):
    ch, cg, ce = coef(0, 0, 0)
    t0, t1, t2 = base_v + 5, base_v + 6, base_v + 7
    out = []
    for i in range(5):
        a(f'v_add_u32 {vr(t0)}, {64 * i}, v0')
        a(f'v_mul_u32_u24 {vr(t1)}, 6554, {vr(t0)}')
        a(f'v_lshrrev_b32 {vr(t1)}, 16, {vr(t1)}')
        a(f'v_mul_u32_u24 {vr(t2)}, 10, {vr(t1)}')
        a(f'v_sub_u32 {vr(t0)}, {vr(t0)}, {vr(t2)}')
        v = base_v + i
        a(f'v_and_b32 {vr(t2)}, 3, {vr(t1)}')
        a(f'v_mul_u32_u24 {vr(v)}, {ce}, {vr(t2)}')
        a(f'v_bfe_u32 {vr(t2)}, {vr(t1)}, 2, 2')
        a(f'v_mad_u32_u24 {vr(v)}, {vr(t2)}, {cg}, {vr(v)}')
        a(f'v_lshrrev_b32 {vr(t2)}, 4, {vr(t1)}')
        a(f'v_mad_u32_u24 {vr(v)}, {vr(t2)}, {ch}, {vr(v)}')
        a(f'v_mul_u32_u24 {vr(v)}, {pitch}, {vr(v)}')
        a(f'v_lshl_add_u32 {vr(v)}, {vr(t0)}, 4, {vr(v)}')
        out.append(v)
    return out

def read_decision(a, t3, t4):
    a('s_barrier')
    a(f'v_mov_b32 {vr(t4)}, 0')
    a(f'ds_read_b32 {vr(t3)}, {vr(t4)} offset:{S2_DEC}')
    a('s_waitcnt lgkmcnt(0)')
    a(f'v_readfirstlane_b32 {sr(S_FAST)}, {vr(t3)}')
    a('s_barrier')

def s2_loader_pre(a, o):
    a.comment('---- S2 loader ----')
    t0, t1, t3, t4 = 1, 2, 3, 4
    a(f'v_and_b32 {vr(t0)}, 15, v0')
    a(f'v_lshlrev_b32 {vr(t0)}, 2, {vr(t0)}')
    a(f'v_add_u32 {vr(t0)}, {WS_FL + FLR}, {vr(t0)}')
    poll(a, [t0], [t1])
    a(f'v_lshlrev_b32 {vr(t0)}, 4, v0')
    read_decision(a, t3, t4)
    a(f's_lshr_b32 {sr(T[3])}, {sr(S_LW)}, 1')
    a(f's_lshl_b32 {sr(T[4])}, {sr(S_P)}, 1')
    a(f's_add_u32 {sr(T[4])}, {sr(T[4])}, {sr(T[3])}')
    a(f's_mul_i32 {sr(T[4])}, {sr(T[4])}, {HEADB}')
    a(f's_and_b32 {sr(T[3])}, {sr(S_LW)}, 1')
    a(f's_cmp_eq_u32 {sr(T[3])}, 0')
    scsel(a, sr(T[5]), WS_QK + 32 * HEADB, WS_VF)
    a(f's_add_u32 {sr(T[4])}, {sr(T[4])}, {sr(T[5])}')
    a(f's_mul_i32 {sr(T[5])}, {sr(S_RB2)}, 5120')
    a(f's_add_u32 {sr(T[4])}, {sr(T[4])}, {sr(T[5])}')
    a(f's_sub_u32 {sr(T[4])}, {sr(T[4])}, 10240')
    a(f's_mul_i32 {sr(T[5])}, {sr(S_LW)}, 15360')
    for grp in (2, 1, 0):
        if grp < 2:
            a(f's_cmp_ge_u32 {sr(S_RB2)}, {2 - grp}')
            a(f's_cselect_b32 {sr(T[6])}, {sr(T[4])}, {OOB:#x}')
        else:
            a(f's_mov_b32 {sr(T[6])}, {sr(T[4])}')
        for i in range(5 * grp, 5 * grp + 5):
            a(f's_add_u32 m0, {sr(T[5])}, {i * 1024}')
            a(f's_add_u32 {sr(T[7])}, {sr(T[6])}, {i * 1024}')
            a(f'buffer_load_dwordx4 {vr(t0)}, {sr(S_WS, 4)}, {sr(T[7])} offen sc1 lds')
    va = nat_addr(a, 8, 1280, lambda rho_h, rho_g, rho_e: (20, 40, 1))
    a(f's_mul_i32 {sr(T[2])}, {sr(S_CI)}, 160')
    a(f's_mul_i32 {sr(T[3])}, {sr(S_LW)}, {160 * 1280}')
    a(f's_add_u32 {sr(T[2])}, {sr(T[2])}, {sr(T[3])}')
    a(f's_mul_i32 {sr(T[3])}, {sr(S_LW)}, 5120')
    for sq in range(5):
        for i in range(5):
            a(f's_add_u32 m0, {sr(T[3])}, {W3_BASE + sq * 20480 + i * 1024}')
            a(f's_add_u32 {sr(T[4])}, {sr(T[2])}, {4 * sq * 1280}')
            a(f'buffer_load_dwordx4 {vr(va[i])}, {sr(S_WO, 4)}, {sr(T[4])} offen lds')
    a('s_waitcnt vmcnt(25)')
    a('s_barrier')

def s2_compute(a, o):
    o.cur = 2
    stamp(a, o, 1)
    V = RegAlloc(256, 1)
    t0, t1, t2, t3, t4 = [V.alloc() for _ in range(5)]
    skip = if_wave(a, 0)
    a(f'v_min_u32 {vr(t0)}, 13, v0')
    a(f'v_and_b32 {vr(t1)}, 1, {vr(t0)}')
    a(f'v_lshrrev_b32 {vr(t0)}, 1, {vr(t0)}')
    a(f's_mul_i32 {sr(T[0])}, {sr(S_P)}, 40')
    a(f's_lshr_b32 {sr(T[1])}, {sr(T[0])}, 7')
    a(f's_add_u32 {sr(T[0])}, {sr(T[0])}, 39')
    a(f's_lshr_b32 {sr(T[0])}, {sr(T[0])}, 7')
    a(f's_sub_u32 {sr(T[0])}, {sr(T[0])}, {sr(T[1])}')
    a(f'v_mul_u32_u24 {vr(t1)}, {sr(T[0])}, {vr(t1)}')
    a(f'v_add_u32 {vr(t1)}, {sr(T[1])}, {vr(t1)}')
    a(f'v_add_u32 {vr(t2)}, 2, {vr(t0)}')
    a(f'v_mul_u32_u24 {vr(t2)}, 86, {vr(t2)}')
    a(f'v_lshrrev_b32 {vr(t2)}, 8, {vr(t2)}')
    a(f'v_mul_u32_u24 {vr(t3)}, 5, {vr(t2)}')
    a(f'v_add_u32 {vr(t1)}, {vr(t1)}, {vr(t3)}')
    a(f'v_mul_u32_u24 {vr(t3)}, 3, {vr(t2)}')
    a(f'v_sub_u32 {vr(t3)}, {vr(t0)}, {vr(t3)}')
    a(f'v_add_u32 {vr(t3)}, 2, {vr(t3)}')
    a(f'v_cmp_eq_u32 vcc, 0, {vr(t2)}')
    a(f'v_cndmask_b32 {vr(t3)}, {vr(t3)}, 0, vcc')
    a(f'v_sub_u32 {vr(t3)}, {sr(S_RB2)}, {vr(t3)}')
    a(f'v_max_i32 {vr(t3)}, 0, {vr(t3)}')
    a(f'v_lshl_add_u32 {vr(t1)}, {vr(t3)}, 4, {vr(t1)}')
    a(f'v_lshlrev_b32 {vr(t1)}, 2, {vr(t1)}')
    a(f'v_add_u32 {vr(t1)}, {WS_FL + FL1}, {vr(t1)}')
    a(f's_lshl_b32 {sr(T[0])}, {sr(S_TEAM)}, 7')
    a(f's_add_u32 {sr(T[0])}, {sr(T[0])}, {WS_FL + FLX - 128}')
    a(f'v_lshl_add_u32 {vr(t3)}, v0, 2, {sr(T[0])}')
    a(f'v_cmp_le_u32 vcc, 32, v0')
    a(f'v_cndmask_b32 {vr(t1)}, {vr(t1)}, {vr(t3)}, vcc')
    poll(a, [t1], [t2], rng=True)
    a(f'v_cmp_ne_u32 vcc, {sr(S_XCC)}, {vr(t2)}')
    a('s_cmp_eq_u32 vcc_hi, 0')
    a(f's_cselect_b32 {sr(T[0])}, 1, 0')
    a(f'v_mov_b32 {vr(t3)}, {sr(T[0])}')
    a(f'v_mov_b32 {vr(t4)}, 0')
    a(f'ds_write_b32 {vr(t4)}, {vr(t3)} offset:{S2_DEC}')
    a('s_waitcnt lgkmcnt(0)')
    a.label(skip)
    read_decision(a, t3, t4)
    stamp(a, o, 2)
    sqb = S_WAVE
    qf = V.alloc(16, 4)
    vq1, vq2 = V.alloc(), V.alloc()
    a(f'v_lshrrev_b32 {vr(t1)}, 4, v0')
    a(f'v_and_b32 {vr(t2)}, 15, v0')
    a(f'v_lshlrev_b32 {vr(t3)}, 8, {vr(t1)}')
    a(f'v_lshl_add_u32 {vr(t3)}, {vr(t2)}, 3, {vr(t3)}')
    a(f'v_mov_b32 {vr(t4)}, {OOB:#x}')
    a(f'v_cmp_gt_u32 vcc, 3, {vr(t1)}')
    a(f'v_cndmask_b32 {vr(vq1)}, {vr(t4)}, {vr(t3)}, vcc')
    a(f'v_add_u32 {vr(t3)}, 128, {vr(t3)}')
    a(f'v_cmp_gt_u32 vcc, 2, {vr(t1)}')
    a(f'v_cndmask_b32 {vr(vq2)}, {vr(t4)}, {vr(t3)}, vcc')
    a(f's_lshl_b32 {sr(T[2])}, {sr(S_P)}, 1')
    a(f's_mul_i32 {sr(T[2])}, {sr(T[2])}, {HEADB}')
    a(f's_lshl_b32 {sr(T[3])}, {sr(S_RB2)}, 3')
    a(f's_lshl_b32 {sr(T[4])}, {sr(sqb)}, 1')
    a(f's_add_u32 {sr(T[3])}, {sr(T[3])}, {sr(T[4])}')
    a(f's_mul_i32 s73, {sr(T[3])}, 20480')
    a(f's_mul_i32 {sr(T[3])}, {sr(T[3])}, 640')
    a(f's_add_u32 {sr(T[2])}, {sr(T[2])}, {sr(T[3])}')
    a(f's_add_u32 {sr(T[2])}, {sr(T[2])}, {WS_QK}')
    for hh in range(2):
        if hh: a(f's_add_u32 {sr(T[2])}, {sr(T[2])}, {HEADB}')
        for qt in range(2):
            f = qf + (hh * 2 + qt) * 4
            a(f'buffer_load_dwordx2 {vr(f, 2)}, {vr(vq1)}, {sr(S_WS, 4)}, {sr(T[2])} offen offset:{qt * 640} sc1')
            a(f'buffer_load_dwordx2 {vr(f + 2, 2)}, {vr(vq2)}, {sr(S_WS, 4)}, {sr(T[2])} offen offset:{qt * 640} sc1')
    for r in range(4):
        a(f'v_lshl_add_u32 {vr(t3)}, {vr(t1)}, 2, {r}')
        a(f'v_cmp_le_u32 {sr(S_MSK + 2 * r, 2)}, {vr(t3)}, {vr(t2)}')
    kad = V.alloc(); vad0 = V.alloc(); vad1 = V.alloc()
    a(f's_mul_i32 {sr(T[2])}, {sr(sqb)}, 1280')
    a(f'v_lshlrev_b32 {vr(t3)}, 8, {vr(t1)}')
    a(f'v_lshl_add_u32 {vr(t3)}, {vr(t2)}, 3, {vr(t3)}')
    a(f'v_add_u32 {vr(kad)}, {sr(T[2])}, {vr(t3)}')
    a(f's_add_u32 {sr(T[2])}, {sr(T[2])}, 15360')
    a(f'v_lshl_add_u32 {vr(vad0)}, v0, 4, {sr(T[2])}')
    a(f'v_lshlrev_b32 {vr(t3)}, 6, {vr(t1)}')
    a(f'v_and_b32 {vr(t4)}, 3, {vr(t2)}')
    a(f'v_lshl_add_u32 {vr(t3)}, {vr(t4)}, 4, {vr(t3)}')
    a(f's_add_u32 {sr(T[2])}, {sr(T[2])}, 1024')
    a(f'v_add_u32 {vr(vad1)}, {sr(T[2])}, {vr(t3)}')
    sc = V.alloc(144, 4)
    def S(qt, kt): return sc + (qt * 18 + kt) * 4
    kf = [V.alloc(4, 4) for _ in range(4)]
    cin = V.alloc(4, 4)
    neg = V.alloc()
    vf = [V.alloc(8, 4) for _ in range(2)]
    mx = V.alloc(4, 2)
    oacc = V.alloc(16, 4)
    opk = V.alloc(16, 4)
    a(f'v_mov_b32 {vr(neg)}, {NEG:#x}')
    for f in vf:
        for r in range(4): a(f'v_mov_b32 {vr(f + 4 + r)}, {sr(S_ONES)}')
    a('s_mov_b32 s70, 0x000f000f')
    a('s_mov_b32 s71, 0x000f000f')
    a(f's_lshl_b32 {sr(T[2])}, {sr(S_RB2)}, 2')
    a(f's_add_u32 {sr(T[2])}, {sr(T[2])}, {sr(sqb)}')
    a('s_waitcnt vmcnt(0) lgkmcnt(0)')
    a('s_barrier')
    stamp(a, o, 3)
    def used(qt, kt):
        if kt == 0 and qt == 1: return False
        if kt == 17 and qt == 0: return False
        return True
    P = lambda r: vr(r, 2)
    for hh in range(2):
        ho = hh * 30720
        def kread(kt):
            f = kf[kt % 4]
            return [f'ds_read_b64 {vr(f, 2)}, {vr(kad)} offset:{ho + kt * 640}', f'ds_read_b64 {vr(f + 2, 2)}, {vr(kad)} offset:{ho + kt * 640 + 128}']
        for kt in range(3):
            for x in kread(kt): a(x)
        for kt in range(18):
            if kt + 3 < 18:
                for x in kread(kt + 3): a(x)
            if kt % 2 == 0:
                jj = kt // 2
                a(f's_cmp_ge_u32 {sr(T[2])}, {8 - jj}')
                a(f's_cselect_b32 {sr(T[3])}, 0, {NEG:#x}')
                for r in range(4): a(f'v_mov_b32 {vr(cin + r)}, {sr(T[3])}')
            rem = min(17, kt + 3) - kt
            a(f's_waitcnt lgkmcnt({2 * rem})')
            for qt in range(2):
                if used(qt, kt):
                    a(f'v_mfma_f32_16x16x32_bf16 {vr(S(qt, kt), 4)}, {vr(kf[kt % 4], 4)}, {vr(qf + (hh * 2 + qt) * 4, 4)}, {vr(cin, 4)}')
        if hh == 0: stamp(a, o, 4)
        def vread(jj):
            f = vf[jj % 2]
            return [f'ds_read_b128 {vr(f, 4)}, {vr(vad0)} offset:{ho + jj * 1280}',
                    's_mov_b64 exec, s[70:71]',
                    f'ds_read_b128 {vr(f + 4, 4)}, {vr(vad1)} offset:{ho + jj * 1280}',
                    's_mov_b64 exec, -1']
        for x in vread(0): a(x)
        for qt in range(2):
            kf_, kl_ = (0, 16) if qt == 0 else (1, 17)
            for r in range(4):
                a(f'v_cndmask_b32 {vr(S(qt, kf_) + r)}, {vr(S(qt, kf_) + r)}, {vr(neg)}, {sr(S_MSK + 2 * r, 2)}')
                a(f'v_cndmask_b32 {vr(S(qt, kl_) + r)}, {vr(neg)}, {vr(S(qt, kl_) + r)}, {sr(S_MSK + 2 * r, 2)}')
            regs = [S(qt, kt) + r for kt in range(18) if used(qt, kt) for r in range(4)]
            m = mx + 2 * qt; m2 = t0
            a(f'v_max3_f32 {vr(m)}, {vr(regs[0])}, {vr(regs[1])}, {vr(regs[2])}')
            a(f'v_max3_f32 {vr(m2)}, {vr(regs[3])}, {vr(regs[4])}, {vr(regs[5])}')
            rest = regs[6:]
            k = 0
            while len(rest) >= 2:
                tgt = m if k % 2 == 0 else m2
                a(f'v_max3_f32 {vr(tgt)}, {vr(tgt)}, {vr(rest[0])}, {vr(rest[1])}')
                rest = rest[2:]; k += 1
            if rest: a(f'v_max_f32 {vr(m)}, {vr(m)}, {vr(rest[0])}')
            a(f'v_max_f32 {vr(m)}, {vr(m)}, {vr(m2)}')
            xg_reduce(a, m, t0, 'v_max_f32')
        if hh == 0: stamp(a, o, 5)
        for jj in range(9):
            for qt in range(2):
                for h in range(2):
                    kt = 2 * jj + h
                    b = S(qt, kt)
                    if used(qt, kt):
                        for x in (0, 2):
                            a(f'v_pk_add_f32 {P(b + x)}, {P(b + x)}, {P(mx + 2 * qt)} op_sel_hi:[1,0] neg_lo:[0,1] neg_hi:[0,1]')
                        for r in range(4): a(f'v_exp_f32 {vr(b + r)}, {vr(b + r)}')
                b0, b1 = S(qt, 2 * jj), S(qt, 2 * jj + 1)
                if used(qt, 2 * jj):
                    a(f'v_cvt_pk_bf16_f32 {vr(b0)}, {vr(b0)}, {vr(b0 + 1)}')
                    a(f'v_cvt_pk_bf16_f32 {vr(b0 + 1)}, {vr(b0 + 2)}, {vr(b0 + 3)}')
                else:
                    a(f'v_mov_b32 {vr(b0)}, 0'); a(f'v_mov_b32 {vr(b0 + 1)}, 0')
                if used(qt, 2 * jj + 1):
                    a(f'v_cvt_pk_bf16_f32 {vr(b0 + 2)}, {vr(b1)}, {vr(b1 + 1)}')
                    a(f'v_cvt_pk_bf16_f32 {vr(b0 + 3)}, {vr(b1 + 2)}, {vr(b1 + 3)}')
                else:
                    a(f'v_mov_b32 {vr(b0 + 2)}, 0'); a(f'v_mov_b32 {vr(b0 + 3)}, 0')
            if jj + 1 < 9:
                for x in vread(jj + 1): a(x)
                a('s_waitcnt lgkmcnt(2)')
            else:
                a('s_waitcnt lgkmcnt(0)')
            f = vf[jj % 2]
            for qt in range(2):
                for tl in range(2):
                    d = vr(oacc + (qt * 2 + tl) * 4, 4)
                    a(f'v_mfma_f32_16x16x32_bf16 {d}, {vr(f + 4 * tl, 4)}, {vr(S(qt, 2 * jj), 4)}, {"0" if jj == 0 else d}')
        for qt in range(2):
            o0, o1 = oacc + (qt * 2) * 4, oacc + (qt * 2 + 1) * 4
            a(f'v_mov_b32 {vr(t0)}, {vr(o1)}')
            a(f'v_mov_b32 {vr(t3)}, {vr(o1)}')
            a(f'v_permlane16_swap_b32 {vr(t0)}, {vr(t3)}')
            a(f'v_rcp_f32 {vr(t4)}, {vr(t3)}')
            for r in range(4):
                a(f'v_mul_f32 {vr(o0 + r)}, {vr(o0 + r)}, {vr(t4)}')
                a(f'v_mul_f32 {vr(o1 + r)}, {vr(o1 + r)}, {vr(t4)}')
            p0 = opk + (qt * 2) * 4 + 2 * hh; p1 = opk + (qt * 2 + 1) * 4 + 2 * hh
            a(f'v_cvt_pk_bf16_f32 {vr(p0)}, {vr(o0)}, {vr(o0 + 1)}')
            a(f'v_cvt_pk_bf16_f32 {vr(p0 + 1)}, {vr(o0 + 2)}, {vr(o0 + 3)}')
            a(f'v_cvt_pk_bf16_f32 {vr(p1)}, {vr(o1)}, {vr(o1 + 1)}')
            a(f'v_cvt_pk_bf16_f32 {vr(p1 + 1)}, {vr(o1 + 2)}, {vr(o1 + 3)}')
        if hh == 0:
            stamp(a, o, 6)
    a(f'v_lshrrev_b32 {vr(t1)}, 4, v0')
    a(f'v_and_b32 {vr(t2)}, 15, v0')
    a(f'v_lshlrev_b32 {vr(t3)}, 12, {vr(t1)}')
    a(f'v_lshl_add_u32 {vr(t3)}, {vr(t2)}, 4, {vr(t3)}')
    a(f'v_lshlrev_b32 {vr(t0)}, 4, {vr(t2)}')
    a(f'v_add_u32 {vr(t0)}, 16384, {vr(t0)}')
    a(f'v_mov_b32 {vr(t4)}, {OOB:#x}')
    a(f'v_cmp_eq_u32 vcc, 0, {vr(t1)}')
    a(f'v_cndmask_b32 {vr(t0)}, {vr(t4)}, {vr(t0)}, vcc')
    a(f's_lshl_b32 {sr(T[4])}, {sr(S_P)}, 8')
    a(f's_add_u32 s73, s73, {sr(T[4])}')
    a(f's_add_u32 s73, s73, {WS_OF}')
    def st_of(sc_):
        for qt in range(2):
            if qt: a(f's_add_u32 {sr(T[4])}, s73, 20480')
            so = 's73' if qt == 0 else sr(T[4])
            a(f'buffer_store_dwordx4 {vr(opk + (qt * 2) * 4, 4)}, {vr(t3)}, {sr(S_WS, 4)}, {so} offen{sc_}')
            a(f'buffer_store_dwordx4 {vr(opk + (qt * 2 + 1) * 4, 4)}, {vr(t0)}, {sr(S_WS, 4)}, {so} offen{sc_}')
    dual(a, o, st_of)
    stamp(a, o, 7)
    a('s_waitcnt vmcnt(0)')
    stamp(a, o, 8)
    from s345 import flagw_off
    flagw_off(a, T[0], FL2)
    set_flag(a, o, T[0], mode='dual', v1=t0, v2=t1)
```

```python
from base import *
from s2 import W3_BASE

VH = 236
S5_CH = 20480
S4_A = 81920
XCH3 = 61440
KL = 12
W5SEQ = [0, 6, 1, 7, 2, 8, 3, 9, 4, 10, 5, 11]

def flagw_off(a, dst, base, nw=4):
    a(f's_lshl_b32 {sr(dst)}, {sr(S_TEAM)}, 5')
    a(f's_add_u32 {sr(dst)}, {sr(dst)}, {sr(S_MEM)}')
    a(f's_lshl_b32 {sr(dst)}, {sr(dst)}, {2 if nw == 4 else 3}')
    a(f's_add_u32 {sr(dst)}, {sr(dst)}, {sr(S_LW if nw == 4 else S_WAVE)}')
    a(f's_lshl_b32 {sr(dst)}, {sr(dst)}, 2')
    a(f's_add_u32 {sr(dst)}, {sr(dst)}, {WS_FL + base}')

def poll_w(a, base, first_mem_sreg, nmem_mask, wave_sreg, v1, v2, nw=4):
    lg = 4 if nw == 4 else 5
    a(f'v_and_b32 v{v1}, {nmem_mask}, v0')
    a(f's_lshl_b32 {sr(T[6])}, {sr(S_TEAM)}, 5')
    a(f's_add_u32 {sr(T[6])}, {sr(T[6])}, {sr(first_mem_sreg)}')
    a(f's_lshl_b32 {sr(T[6])}, {sr(T[6])}, {lg}')
    if wave_sreg is not None:
        a(f's_lshl_b32 {sr(T[7])}, {sr(wave_sreg)}, 2')
        a(f's_add_u32 {sr(T[6])}, {sr(T[6])}, {sr(T[7])}')
    a(f's_add_u32 {sr(T[6])}, {sr(T[6])}, {WS_FL + base}')
    a(f'v_lshl_add_u32 v{v1}, v{v1}, {lg}, {sr(T[6])}')
    if wave_sreg is None:
        sh = {7: 3, 15: 4}[nmem_mask]
        a(f'v_bfe_u32 v{v2}, v0, {sh}, {2 if nw == 4 else 3}')
        a(f'v_lshl_add_u32 v{v1}, v{v2}, 2, v{v1}')
    poll(a, [v1], [v2])

def tr_base(a, dst, t0, t1):
    a(f'v_lshrrev_b32 {vr(t0)}, 4, v0')
    a(f'v_bfe_u32 {vr(t1)}, v0, 2, 2')
    a(f'v_lshl_add_u32 {vr(t0)}, {vr(t0)}, 2, {vr(t1)}')
    a(f'v_mul_u32_u24 {vr(t0)}, 160, {vr(t0)}')
    a(f'v_and_b32 {vr(t1)}, 3, v0')
    a(f'v_lshl_add_u32 {vr(dst)}, {vr(t1)}, 3, {vr(t0)}')

def load_w4(a, o, base_reg, ks0, nks, vl, sbase, tmp):
    a(f's_lshl_b32 {sr(sbase)}, {sr(S_CI)}, 2')
    a(f's_add_u32 {sr(sbase)}, {sr(sbase)}, {sr(S_LW)}')
    a(f's_mul_i32 {sr(sbase)}, {sr(sbase)}, {20 * 3 * 1024}')
    a(f's_add_u32 {sr(sbase)}, {sr(sbase)}, {WS_WT4 + ks0 * 3072}')
    for u in range(nks * 3):
        if u % 4 == 0 and u: a(f's_add_u32 {sr(sbase)}, {sr(sbase)}, 4096')
        a(f'buffer_load_dwordx4 {vr(base_reg + 4 * u, 4)}, {vr(vl)}, {sr(S_WS, 4)}, {sr(sbase)} offen offset:{(u % 4) * 1024} sc1')

def s4(a, o, V, loader, wreg, post_p1=None):
    o.cur = 4 if not loader else 7
    ks_list = list(range(0, KL)) if loader else list(range(KL, 20))
    acc = V.alloc(48, 4)
    cs = V.alloc(12, 4)
    ones = V.alloc(4, 4)
    fA = V.alloc(16, 4)
    aad = [V.alloc() for _ in range(2)]
    t0, t1, t2, t3, t4 = [V.alloc() for _ in range(5)]
    stt = wreg
    b1r = V.alloc(6, 2)
    rn = V.alloc(8, 2)
    mts = (2, 3) if loader else (0, 1)
    rst = {mt: rn + 4 * i for i, mt in enumerate(mts)}; nmr = {mt: rn + 4 * i + 2 for i, mt in enumerate(mts)}
    a(f's_and_b32 {sr(T[5])}, {sr(S_MEM)}, 24')
    poll_w(a, FL3, T[5], 7, S_LW, t0, t1)
    stamp(a, o, 1)
    half = 0 if loader else 1
    a(f'v_lshlrev_b32 {vr(t0)}, 4, v0')
    a(f's_lshr_b32 {sr(T[0])}, {sr(S_R0)}, 4')
    a(f's_add_u32 {sr(T[0])}, {sr(T[0])}, {sr(S_LW)}')
    a(f's_mul_i32 {sr(T[0])}, {sr(T[0])}, 20480')
    a(f's_add_u32 {sr(T[0])}, {sr(T[0])}, {WS_HF + half * 10240}')
    a(f's_mul_i32 {sr(T[1])}, {sr(S_LW)}, 20480')
    for k in range(10):
        a(f's_add_u32 m0, {sr(T[1])}, {S4_A + half * 10240 + k * 1024}')
        a(f's_add_u32 {sr(T[2])}, {sr(T[0])}, {k * 1024}')
        a(f'buffer_load_dwordx4 {vr(t0)}, {sr(S_WS, 4)}, {sr(T[2])} offen sc1 lds')
    a(f'v_lshrrev_b32 {vr(t1)}, 4, v0')
    a(f'v_lshlrev_b32 {vr(t2)}, 3, {vr(t1)}')
    a(f's_mul_i32 {sr(T[2])}, {sr(S_CI)}, 384')
    a(f's_mul_i32 {sr(T[3])}, {sr(S_LW)}, 96')
    a(f's_add_u32 {sr(T[2])}, {sr(T[2])}, {sr(T[3])}')
    for jn in range(3):
        a(f'buffer_load_dwordx2 {vr(b1r + 2 * jn, 2)}, {vr(t2)}, {sr(S_B1, 4)}, {sr(T[2])} offen offset:{jn * 32}')
    a(f'v_add_u32 {vr(aad[0])}, 0x10000, {vr(t0)}')
    a(f'v_add_u32 {vr(aad[1])}, 0x20000, {vr(t0)}')
    for i in range(4): a(f'v_mov_b32 {vr(ones + i)}, {sr(S_ONES)}')
    vst = V.alloc()
    a(f'v_and_b32 {vr(vst)}, 15, v0')
    a(f'v_lshlrev_b32 {vr(vst)}, 6, {vr(vst)}')
    a(f's_lshl_b32 s73, {sr(S_R0)}, 6')
    a(f's_add_u32 s73, s73, {WS_ST2}')
    a('s_waitcnt vmcnt(0)')
    a('s_barrier')
    stamp(a, o, 2)
    if post_p1: post_p1()
    def aread(ks, mt):
        off = S4_A + mt * 20480 + ks * 1024 - 65536
        return f'ds_read_b128 {vr(fA + 4 * mt, 4)}, {vr(aad[off // 65536])} offset:{off % 65536}'
    def stat_loads(mt):
        return [f'buffer_load_dwordx4 {vr(stt + 4 * k, 4)}, {vr(vst)}, {sr(S_WS, 4)}, s73 offen offset:{mt * 1024 + k * 16} sc1' for k in range(4)]
    def stat_calc(mt):
        b = stt; F = []
        F.append(f'v_add_f32 {vr(t0)}, {vr(b)}, {vr(b + 2)}')
        for i in range(2, 8): F.append(f'v_add_f32 {vr(t0)}, {vr(t0)}, {vr(b + 2 * i)}')
        F.append(f'v_mul_f32 {vr(t0)}, 0.125, {vr(t0)}')
        F.append(f'v_add_f32 {vr(t1)}, {vr(b + 1)}, {vr(b + 3)}')
        for i in range(2, 8): F.append(f'v_add_f32 {vr(t1)}, {vr(t1)}, {vr(b + 2 * i + 1)}')
        for i in range(8):
            F.append(f'v_sub_f32 {vr(t2)}, {vr(b + 2 * i)}, {vr(t0)}')
            if i == 0: F.append(f'v_mul_f32 {vr(t3)}, {vr(t2)}, {vr(t2)}')
            else: F.append(f'v_fmac_f32 {vr(t3)}, {vr(t2)}, {vr(t2)}')
        F.append(f'v_mov_b32 {vr(t4)}, 0x42a00000')
        F.append(f'v_fmac_f32 {vr(t1)}, {vr(t3)}, {vr(t4)}')
        F.append(f'v_mov_b32 {vr(t4)}, {f2u(1e-5):#x}')
        F.append(f'v_fmac_f32 {vr(t4)}, {f2u(1.0 / 640.0):#x}, {vr(t1)}')
        F.append(f'v_rsq_f32 {vr(rst[mt])}, {vr(t4)}')
        F.append(f'v_mul_f32 {vr(nmr[mt])}, {vr(t0)}, {vr(rst[mt])}')
        F.append(f'v_sub_f32 {vr(nmr[mt])}, 0, {vr(nmr[mt])}')
        return F
    for mt in range(4): a(aread(ks_list[0], mt))
    n = len(ks_list)
    fillq = []
    for i, ks in enumerate(ks_list):
        if i == 2:
            for x in stat_loads(mts[0]): a(x)
        if i == 4:
            a('s_waitcnt vmcnt(0)'); fillq = stat_calc(mts[0])
        if i == 6:
            for f in fillq: a(f)
            fillq = []
            for x in stat_loads(mts[1]): a(x)
        if i == n - 1 and n > 9:
            a('s_waitcnt vmcnt(0)'); fillq = stat_calc(mts[1])
        last = (i == n - 1)
        for mt in range(4):
            a(f's_waitcnt lgkmcnt({3 if not last else 3 - mt})')
            for jn in range(3):
                W = vr(wreg + (i * 3 + jn) * 4, 4)
                d = vr(acc + (mt * 3 + jn) * 4, 4)
                a(f'v_mfma_f32_16x16x32_bf16 {d}, {W}, {vr(fA + 4 * mt, 4)}, {"0" if i == 0 else d}')
                for f in fillq[:2]: a(f)
                fillq = fillq[2:]
            if not last: a(aread(ks_list[i + 1], mt))
            if mt < 3:
                W = vr(wreg + (i * 3 + mt) * 4, 4)
                d = vr(cs + 4 * mt, 4)
                a(f'v_mfma_f32_16x16x32_bf16 {d}, {W}, {vr(ones, 4)}, {"0" if i == 0 else d}')
    if n > 9:
        for f in fillq: a(f)
    else:
        a('s_waitcnt vmcnt(0)')
        for f in stat_calc(mts[1]): a(f)
    a('s_barrier')
    stamp(a, o, 3)
    give = (0, 1) if loader else (2, 3)
    xw = V.alloc(); xr = V.alloc()
    a(f'v_lshlrev_b32 {vr(t0)}, 4, v0')
    a(f's_mul_i32 {sr(T[0])}, {sr(S_LW)}, 18432')
    a(f's_add_u32 {sr(T[0])}, {sr(T[0])}, {S4_A}')
    a(f'v_add_u32 {vr(xw)}, {sr(T[0])}, {vr(t0)}')
    a(f'v_add_u32 {vr(xr)}, {9216 if not loader else 0}, {vr(xw)}')
    if loader: a(f'v_add_u32 {vr(xw)}, 9216, {vr(xw)}')
    k = 0
    for mt in give:
        for jn in range(3):
            a(f'ds_write_b128 {vr(xw)}, {vr(acc + (mt * 3 + jn) * 4, 4)} offset:{k * 1024}'); k += 1
    for jn in range(3):
        a(f'ds_write_b128 {vr(xw)}, {vr(cs + 4 * jn, 4)} offset:{k * 1024}'); k += 1
    a('s_waitcnt lgkmcnt(0)')
    a('s_barrier')
    k = 0
    tmpb = [acc + (mt * 3 + jn) * 4 for mt in give for jn in range(3)]
    for r in tmpb:
        a(f'ds_read_b128 {vr(r, 4)}, {vr(xr)} offset:{k * 1024}'); k += 1
    c2 = fA
    for jn in range(3):
        a(f'ds_read_b128 {vr(c2 + 4 * jn, 4)}, {vr(xr)} offset:{k * 1024}'); k += 1
    bf = wreg + 16
    for jn in range(3):
        for hf in range(2):
            a(f'v_lshlrev_b32 {vr(bf + 4 * jn + 2 * hf)}, 16, {vr(b1r + 2 * jn + hf)}')
            a(f'v_and_b32 {vr(bf + 4 * jn + 2 * hf + 1)}, 0xffff0000, {vr(b1r + 2 * jn + hf)}')
    a('s_waitcnt lgkmcnt(0)')
    a('s_barrier')
    stamp(a, o, 4)
    P = lambda r: vr(r, 2)
    for jn in range(3):
        for h in (0, 2): a(f'v_pk_add_f32 {P(cs + 4 * jn + h)}, {P(cs + 4 * jn + h)}, {P(c2 + 4 * jn + h)}')
    k = 0
    for mt in mts:
        for jn in range(3):
            d = acc + (mt * 3 + jn) * 4
            for h in (0, 2): a(f'v_pk_add_f32 {P(d + h)}, {P(d + h)}, {P(tmpb[k] + h)}')
            k += 1
    c0 = -GELU_C; c1 = -GELU_C * 0.044715
    a(f's_mov_b32 s70, {f2u(c1):#x}')
    a(f's_mov_b32 s71, {f2u(c1):#x}')
    vc0 = V.alloc(2, 2)
    a(f'v_mov_b32 {vr(vc0)}, {f2u(c0):#x}')
    a(f'v_mov_b32 {vr(vc0 + 1)}, {f2u(c0):#x}')
    tt = stt
    pk = tmpb
    k = 0
    for jn in range(3):
        for mt in mts:
            d = acc + (mt * 3 + jn) * 4
            tq = tt + 4 * (k % 2)
            for h in (0, 2): a(f'v_pk_fma_f32 {P(tq + h)}, {P(cs + 4 * jn + h)}, {P(nmr[mt])}, {P(bf + 4 * jn + h)} op_sel_hi:[1,0,1]')
            for h in (0, 2): a(f'v_pk_fma_f32 {P(d + h)}, {P(d + h)}, {P(rst[mt])}, {P(tq + h)} op_sel_hi:[1,0,1]')
            for h in (0, 2): a(f'v_pk_mul_f32 {P(tq + h)}, {P(d + h)}, {P(d + h)}')
            for h in (0, 2): a(f'v_pk_fma_f32 {P(tq + h)}, {P(tq + h)}, s[70:71], {P(vc0)}')
            for h in (0, 2): a(f'v_pk_mul_f32 {P(tq + h)}, {P(tq + h)}, {P(d + h)}')
            for r in range(4): a(f'v_exp_f32 {vr(tq + r)}, {vr(tq + r)}')
            for h in (0, 2): a(f'v_pk_add_f32 {P(tq + h)}, {P(tq + h)}, 1.0 op_sel_hi:[1,0]')
            for r in range(4): a(f'v_rcp_f32 {vr(tq + r)}, {vr(tq + r)}')
            for h in (0, 2): a(f'v_pk_mul_f32 {P(d + h)}, {P(d + h)}, {P(tq + h)}')
            p = pk[k]; k += 1
            a(f'v_cvt_pk_bf16_f32 {vr(p)}, {vr(d)}, {vr(d + 1)}')
            a(f'v_cvt_pk_bf16_f32 {vr(p + 1)}, {vr(d + 2)}, {vr(d + 3)}')
    a(f'v_and_b32 {vr(t0)}, 15, v0')
    a(f'v_lshrrev_b32 {vr(t1)}, 4, v0')
    gad = t2
    a(f'v_lshlrev_b32 {vr(gad)}, 8, {vr(t1)}')
    a(f'v_lshl_add_u32 {vr(gad)}, {vr(t0)}, 4, {vr(gad)}')
    a(f's_lshr_b32 {sr(T[2])}, {sr(S_R0)}, 4')
    a(f's_mul_i32 {sr(T[2])}, {sr(T[2])}, 49152')
    a(f's_add_u32 {sr(T[2])}, {sr(T[2])}, {WS_GF}')
    a(f's_mul_i32 {sr(T[3])}, {sr(S_CI)}, 12')
    a(f's_mul_i32 {sr(T[4])}, {sr(S_LW)}, 3')
    a(f's_add_u32 {sr(T[3])}, {sr(T[3])}, {sr(T[4])}')
    def st_gf(sc):
        k = 0
        for jn in range(3):
            a(f's_add_u32 {sr(T[4])}, {sr(T[3])}, {jn}')
            a(f's_lshr_b32 {sr(T[5])}, {sr(T[4])}, 1')
            a(f's_lshl_b32 {sr(T[5])}, {sr(T[5])}, 10')
            a(f's_and_b32 {sr(T[4])}, {sr(T[4])}, 1')
            a(f's_lshl_b32 {sr(T[4])}, {sr(T[4])}, 3')
            a(f's_add_u32 {sr(T[5])}, {sr(T[5])}, {sr(T[4])}')
            a(f's_add_u32 {sr(T[5])}, {sr(T[5])}, {sr(T[2])}')
            for mt in mts:
                a(f's_add_u32 {sr(T[4])}, {sr(T[5])}, {mt * 49152}')
                a(f'buffer_store_dwordx2 {vr(pk[k], 2)}, {vr(gad)}, {sr(S_WS, 4)}, {sr(T[4])} offen{sc}')
                k += 1
    dual(a, o, st_gf)
    stamp(a, o, 5)
    a('s_waitcnt vmcnt(0)')
    stamp(a, o, 6)
    flagw_off(a, T[0], FL4, nw=8)
    set_flag(a, o, T[0], mode='dual', v1=t0, v2=t1)

def loader345(a, o):
    a.comment('---- loader S2(W4 prefetch)/S3/S4/S5 ----')
    o.cur = 6
    V = RegAlloc(256, 1)
    vl = V.alloc(); t0 = V.alloc(); t1 = V.alloc()
    wreg = V.alloc(KL * 12, 4)
    a(f'v_lshlrev_b32 {vr(vl)}, 4, v0')
    load_w4(a, o, wreg, 0, KL, vl, T[0], T[1])
    ntouch = 0
    if o.touchw2:
        touch(a, S_W2, 120, 2, lambda d: a(f's_mov_b32 {sr(d)}, {sr(S_GW)}'), t0, 250, T[0]); ntouch = 2
    stamp(a, o, 1)
    S5B = 68
    from s2 import nat_addr
    vb = V.alloc(8)
    va5 = nat_addr(a, vb, 1280, lambda *x: (16, 4, 1))
    a(f's_mul_i32 {sr(S5B)}, {sr(S_CI)}, 160')
    a(f's_mul_i32 s69, {sr(S_LW)}, {32 * 1280}')
    a(f's_add_u32 {sr(S5B)}, {sr(S5B)}, s69')
    a(f's_mul_i32 s69, {sr(S_LW)}, 5120')
    q = VQ(a)
    def issue5(i):
        c = W5SEQ[i]; slot = (i % 8) * S5_CH
        for n in range(5):
            a(f's_add_u32 m0, s69, {slot + n * 1024}')
            a(f's_add_u32 {sr(T[2])}, {sr(S5B)}, {c * 128 * 1280}')
            a(f'buffer_load_dwordx4 {vr(va5[n])}, {sr(S_W2, 4)}, {sr(T[2])} offen lds')
        q.add(('d', i), 5)
    a(f's_waitcnt vmcnt({KL * 3 + ntouch})')
    a('s_barrier')
    issue5(0); issue5(1); issue5(2)
    a('s_barrier')
    a('s_barrier')
    V.release(vb, 8)
    s4(a, o, V, True, wreg, post_p1=None)
    q.q = []
    va5[:] = nat_addr(a, wreg, 1280, lambda *x: (16, 4, 1))
    issue5(4)
    for p in range(6):
        q.wait(('d', 2 * p + 1))
        a('s_barrier')
        if p == 0: issue5(5); issue5(6); issue5(7)
        if p >= 1 and 2 * (p + 3) + 1 < 12:
            issue5(2 * (p + 3)); issue5(2 * (p + 3) + 1)
    a('s_barrier')
    a('s_barrier')

def s3_compute(a, o):
    o.cur = 3
    stamp(a, o, 1)
    V = RegAlloc(236, 1)
    t0, t1, t2, t3 = [V.alloc() for _ in range(4)]
    al = V.alloc(); al2 = V.alloc(); al3 = V.alloc()
    wreg = V.alloc((20 - KL) * 12, 4)
    o.wreg_c = wreg
    a(f'v_lshlrev_b32 {vr(al)}, 4, v0')
    load_w4(a, o, wreg, KL, 20 - KL, al, T[0], T[1])
    xr = V.alloc(10, 2)
    a(f'v_and_b32 {vr(t0)}, 15, v0')
    a(f'v_lshrrev_b32 {vr(t1)}, 4, v0')
    a(f'v_mul_u32_u24 {vr(t2)}, 0x500, {vr(t0)}')
    a(f'v_lshl_add_u32 {vr(t2)}, {vr(t1)}, 3, {vr(t2)}')
    a(f's_lshl_b32 {sr(T[2])}, {sr(S_WAVE)}, 4')
    a(f's_add_u32 {sr(T[2])}, {sr(T[2])}, {sr(S_R0)}')
    a(f's_mul_i32 {sr(T[2])}, {sr(T[2])}, 1280')
    a(f's_mul_i32 {sr(T[3])}, {sr(S_CI)}, 160')
    a(f's_add_u32 {sr(S_OUTOFF)}, {sr(T[2])}, {sr(T[3])}')
    for j in range(5):
        a(f'buffer_load_dwordx2 {vr(xr + 2 * j, 2)}, {vr(t2)}, {sr(S_X, 4)}, {sr(S_OUTOFF)} offen offset:{j * 32}')
    NR = 10
    af = V.alloc(4 * NR, 4)
    a(f'v_add_u32 {vr(al2)}, 0x10000, {vr(al)}')
    a(f'v_add_u32 {vr(al3)}, 0x20000, {vr(al)}')
    a(f's_lshr_b32 {sr(S_TT)}, {sr(S_R0)}, 4')
    a(f's_add_u32 {sr(S_TT)}, {sr(S_TT)}, {sr(S_WAVE)}')
    a(f's_and_b32 {sr(T[2])}, {sr(S_TT)}, 0xfffffffe')
    a(f's_mul_i32 {sr(T[2])}, {sr(T[2])}, 20480')
    a(f's_and_b32 s68, {sr(S_WAVE)}, 1')
    a(f's_mul_i32 {sr(T[3])}, s68, 10240')
    a(f's_add_u32 {sr(T[2])}, {sr(T[2])}, {sr(T[3])}')
    a(f's_add_u32 {sr(T[2])}, {sr(T[2])}, {WS_OF}')
    a(f's_add_u32 s69, {sr(T[2])}, 20480')
    vla = V.alloc()
    a(f'v_lshlrev_b32 {vr(vla)}, 4, v0')
    tr_base(a, al, t0, t1)
    a(f's_mul_i32 {sr(T[3])}, s68, 51200')
    a(f'v_add_u32 {vr(al)}, {sr(T[3])}, {vr(al)}')
    a(f'v_add_u32 {vr(al2)}, 0x10000, {vr(al)}')
    a(f'v_add_u32 {vr(al3)}, 0x20000, {vr(al)}')
    a(f's_lshr_b32 {sr(T[1])}, {sr(S_R0)}, 7')
    a(f's_and_b32 {sr(T[1])}, {sr(T[1])}, 1')
    a(f's_lshl_b32 {sr(T[1])}, {sr(T[1])}, 4')
    a(f's_lshr_b32 {sr(T[3])}, {sr(S_TT)}, 1')
    a(f's_and_b32 {sr(T[3])}, {sr(T[3])}, 3')
    poll_w(a, FL2, T[1], 15, T[3], t0, t1)
    stamp(a, o, 2)
    q = VQ(a)
    def aload(u):
        s, m = u // 2, u % 2
        base = T[2] if m == 0 else 69
        a(f's_add_u32 {sr(T[4])}, {sr(base)}, {(s // 4) * 4096}')
        a(f'buffer_load_dwordx4 {vr(af + 4 * (u % NR), 4)}, {vr(vla)}, {sr(S_WS, 4)}, {sr(T[4])} offen offset:{(s % 4) * 1024} sc1')
        q.add(('a', u))
    NPRE = 8
    for u in range(NPRE): aload(u)
    a('s_barrier')
    acc = V.alloc(40, 4)
    wf = [V.alloc(20, 4) for _ in range(2)]
    als = [al, al2, al3]
    def wreads(s):
        L = []
        for j in range(5):
            for h in range(2):
                off = W3_BASE + s * 5120 + h * 2560 + j * 32
                L.append(f'ds_read_b64_tr_b16 {vr(wf[s % 2] + 4 * j + 2 * h, 2)}, {vr(als[off // 65536])} offset:{off % 65536}')
        return L
    for x in wreads(0): a(x)
    stamp(a, o, 3)
    for s in range(10):
        R = wreads(s + 1) if s + 1 < 10 else []
        for u in (2 * s + NPRE, 2 * s + NPRE + 1):
            if u < 20: aload(u)
        q.wait(('a', 2 * s + 1), 'lgkmcnt(0)')
        M = []
        for j in range(5):
            for m in range(2):
                d = vr(acc + (m * 5 + j) * 4, 4)
                M.append(f'v_mfma_f32_16x16x32_bf16 {d}, {vr(wf[s % 2] + 4 * j, 4)}, {vr(af + 4 * ((2 * s + m) % NR), 4)}, {"0" if s == 0 else d}')
        interleave(a, M, R)
    a('s_barrier')
    stamp(a, o, 4)
    V.release(af, 4 * NR); V.release(wf[1], 20)
    xa = V.alloc()
    a(f'v_lshlrev_b32 {vr(xa)}, 4, v0')
    a(f's_mul_i32 {sr(T[3])}, {sr(S_WAVE)}, 5120')
    a(f's_add_u32 {sr(T[3])}, {sr(T[3])}, {XCH3}')
    a(f'v_add_u32 {vr(t0)}, {sr(T[3])}, {vr(xa)}')
    a(f's_xor_b32 {sr(T[3])}, {sr(S_WAVE)}, 1')
    a(f's_mul_i32 {sr(T[3])}, {sr(T[3])}, 5120')
    a(f's_add_u32 {sr(T[3])}, {sr(T[3])}, {XCH3}')
    a(f'v_add_u32 {vr(t1)}, {sr(T[3])}, {vr(xa)}')
    pair_reduce(a, acc, t0, t1, wf[0], 's68')
    hacc = acc
    pk = V.alloc(10, 2)
    for j in range(5):
        for hf in range(2):
            xs = xr + 2 * j + hf
            i0 = hacc + 4 * j + 2 * hf
            a(f'v_lshlrev_b32 {vr(t0)}, 16, {vr(xs)}')
            a(f'v_and_b32 {vr(t1)}, 0xffff0000, {vr(xs)}')
            a(f'v_add_f32 {vr(i0)}, {vr(i0)}, {vr(t0)}')
            a(f'v_add_f32 {vr(i0 + 1)}, {vr(i0 + 1)}, {vr(t1)}')
            a(f'v_cvt_pk_bf16_f32 {vr(pk + 2 * j + hf)}, {vr(i0)}, {vr(i0 + 1)}')
    a(f'v_and_b32 {vr(t0)}, 15, v0')
    a(f'v_lshrrev_b32 {vr(t1)}, 4, v0')
    a(f'v_lshlrev_b32 {vr(t2)}, 8, {vr(t1)}')
    a(f'v_lshl_add_u32 {vr(t2)}, {vr(t0)}, 4, {vr(t2)}')
    a(f's_mul_i32 {sr(T[2])}, {sr(S_TT)}, 20480')
    a(f's_add_u32 {sr(T[2])}, {sr(T[2])}, {WS_HF}')
    a(f's_mul_i32 {sr(T[3])}, {sr(S_CI)}, 5')
    def st_hf(sc):
        for j in range(5):
            a(f's_add_u32 {sr(T[4])}, {sr(T[3])}, {j}')
            a(f's_lshr_b32 {sr(T[5])}, {sr(T[4])}, 1')
            a(f's_lshl_b32 {sr(T[5])}, {sr(T[5])}, 10')
            a(f's_and_b32 {sr(T[4])}, {sr(T[4])}, 1')
            a(f's_lshl_b32 {sr(T[4])}, {sr(T[4])}, 3')
            a(f's_add_u32 {sr(T[5])}, {sr(T[5])}, {sr(T[4])}')
            a(f's_add_u32 {sr(T[5])}, {sr(T[5])}, {sr(T[2])}')
            a(f'buffer_store_dwordx2 {vr(pk + 2 * j, 2)}, {vr(t2)}, {sr(S_WS, 4)}, {sr(T[5])} offen{sc}')
    dual(a, o, st_hf)
    for k in range(10):
        a(f'v_lshlrev_b32 {vr(VH + 2 * k)}, 16, {vr(pk + k)}')
        a(f'v_and_b32 {vr(VH + 2 * k + 1)}, 0xffff0000, {vr(pk + k)}')
    sm = V.alloc(); m2 = V.alloc(); sm2 = V.alloc()
    a(f'v_add_f32 {vr(sm)}, {vr(VH)}, {vr(VH + 1)}')
    a(f'v_add_f32 {vr(sm2)}, {vr(VH + 2)}, {vr(VH + 3)}')
    for k in range(4, 20, 2):
        a(f'v_add_f32 {vr(sm)}, {vr(sm)}, {vr(VH + k)}')
        a(f'v_add_f32 {vr(sm2)}, {vr(sm2)}, {vr(VH + k + 1)}')
    a(f'v_add_f32 {vr(sm)}, {vr(sm)}, {vr(sm2)}')
    xg_reduce(a, sm, t3, 'v_add_f32')
    a(f'v_mul_f32 {vr(sm)}, {f2u(1.0 / 80.0):#x}, {vr(sm)}')
    for k in range(20):
        tt = t3 if k % 2 == 0 else t1
        mm = m2 if k % 2 == 0 else sm2
        a(f'v_sub_f32 {vr(tt)}, {vr(VH + k)}, {vr(sm)}')
        if k < 2: a(f'v_mul_f32 {vr(mm)}, {vr(tt)}, {vr(tt)}')
        else: a(f'v_fmac_f32 {vr(mm)}, {vr(tt)}, {vr(tt)}')
    a(f'v_add_f32 {vr(m2)}, {vr(m2)}, {vr(sm2)}')
    xg_reduce(a, m2, t3, 'v_add_f32')
    st = V.alloc(2, 2)
    a(f'v_mov_b32 {vr(st)}, {vr(sm)}')
    a(f'v_mov_b32 {vr(st + 1)}, {vr(m2)}')
    a(f'v_lshrrev_b32 {vr(t1)}, 4, v0')
    a(f'v_lshlrev_b32 {vr(t2)}, 6, {vr(t0)}')
    a(f'v_mov_b32 {vr(t3)}, {OOB:#x}')
    a(f'v_cmp_eq_u32 vcc, 0, {vr(t1)}')
    a(f'v_cndmask_b32 {vr(t2)}, {vr(t3)}, {vr(t2)}, vcc')
    a(f's_lshl_b32 {sr(T[2])}, {sr(S_TT)}, 10')
    a(f's_lshl_b32 {sr(T[3])}, {sr(S_CI)}, 3')
    a(f's_add_u32 {sr(T[2])}, {sr(T[2])}, {sr(T[3])}')
    a(f's_add_u32 {sr(T[2])}, {sr(T[2])}, {WS_ST2}')
    dual(a, o, lambda sc: a(f'buffer_store_dwordx2 {vr(st, 2)}, {vr(t2)}, {sr(S_WS, 4)}, {sr(T[2])} offen{sc}'))
    a('s_waitcnt vmcnt(0)')
    stamp(a, o, 5)
    flagw_off(a, T[0], FL3)
    set_flag(a, o, T[0], mode='dual', v1=t0, v2=t1)

def pair_reduce(a, acc, vwr, vrd, tmp, s_kh, extra_barriers=0):
    l1 = a.newlabel('L_kh1'); l2 = a.newlabel('L_khj')
    a(f's_cmp_eq_u32 {s_kh}, 0')
    a(f's_cbranch_scc0 {l1}')
    for j in range(5): a(f'ds_write_b128 {vr(vwr)}, {vr(acc + (5 + j) * 4, 4)} offset:{j * 1024}')
    a(f's_branch {l2}')
    a.label(l1)
    for j in range(5): a(f'ds_write_b128 {vr(vwr)}, {vr(acc + j * 4, 4)} offset:{j * 1024}')
    a('s_waitcnt lgkmcnt(0)')
    for r in range(20): a(f'v_mov_b32 {vr(acc + r)}, {vr(acc + 20 + r)}')
    a.label(l2)
    a('s_waitcnt lgkmcnt(0)')
    a('s_barrier')
    for j in range(5): a(f'ds_read_b128 {vr(tmp + 4 * j, 4)}, {vr(vrd)} offset:{j * 1024}')
    a('s_waitcnt lgkmcnt(0)')
    for r in range(0, 20, 2):
        a(f'v_pk_add_f32 {vr(acc + r, 2)}, {vr(acc + r, 2)}, {vr(tmp + r, 2)}')

def s5_compute(a, o):
    o.cur = 5
    V = RegAlloc(236, 1)
    NR = 16
    af = V.alloc(4 * NR, 4)
    acc = V.alloc(40, 4)
    wf = [V.alloc(20, 4) for _ in range(2)]
    al = [V.alloc() for _ in range(3)]
    b2r = V.alloc(10, 2)
    vla = V.alloc()
    t0, t1, t2 = [V.alloc() for _ in range(3)]
    a(f'v_lshlrev_b32 {vr(vla)}, 4, v0')
    a(f's_and_b32 s68, {sr(S_WAVE)}, 1')
    a(f's_mul_i32 {sr(T[3])}, s68, {S5_CH}')
    tr_base(a, al[0], t0, t1)
    a(f'v_add_u32 {vr(al[0])}, {sr(T[3])}, {vr(al[0])}')
    a(f'v_add_u32 {vr(al[1])}, 0x10000, {vr(al[0])}')
    a(f'v_add_u32 {vr(al[2])}, 0x20000, {vr(al[0])}')
    a(f's_and_b32 {sr(T[2])}, {sr(S_TT)}, 0xfffffffe')
    a(f's_mul_i32 {sr(T[2])}, {sr(T[2])}, 49152')
    a(f's_mul_i32 {sr(T[3])}, s68, 24576')
    a(f's_add_u32 {sr(T[2])}, {sr(T[2])}, {sr(T[3])}')
    a(f's_add_u32 {sr(T[2])}, {sr(T[2])}, {WS_GF}')
    a(f's_add_u32 s69, {sr(T[2])}, 49152')
    a(f'v_lshrrev_b32 {vr(t1)}, 4, v0')
    a(f'v_lshlrev_b32 {vr(t2)}, 3, {vr(t1)}')
    a(f's_mul_i32 {sr(T[3])}, {sr(S_CI)}, 160')
    for j in range(5):
        a(f'buffer_load_dwordx2 {vr(b2r + 2 * j, 2)}, {vr(t2)}, {sr(S_B2, 4)}, {sr(T[3])} offen offset:{j * 32}')
    a(f's_and_b32 {sr(T[1])}, {sr(S_MEM)}, 24')
    poll_w(a, FL4, T[1], 7, None, t0, t1, nw=8)
    stamp(a, o, 9)
    q = VQ(a)
    def aload(u):
        s, m = u // 2, u % 2
        base = T[2] if m == 0 else 69
        a(f's_add_u32 {sr(T[4])}, {sr(base)}, {(s // 4) * 4096}')
        a(f'buffer_load_dwordx4 {vr(af + 4 * (u % NR), 4)}, {vr(vla)}, {sr(S_WS, 4)}, {sr(T[4])} offen offset:{(s % 4) * 1024} sc1')
        q.add(('a', u))
    NPRE = o.npre5
    for u in range(NPRE): aload(u)
    def wreads(s):
        p = s // 4
        L = []
        for j in range(5):
            for h in range(2):
                off = ((2 * p) % 8) * S5_CH + (s % 4) * 5120 + h * 2560 + j * 32
                L.append(f'ds_read_b64_tr_b16 {vr(wf[s % 2] + 4 * j + 2 * h, 2)}, {vr(al[off // 65536])} offset:{off % 65536}')
        return L
    a('s_barrier')
    stamp(a, o, 1)
    for x in wreads(0): a(x)
    for s in range(24):
        q.wait(('a', 2 * s + 1), 'lgkmcnt(0)')
        R = []
        if s + 1 < 24:
            if (s + 1) % 4 == 0:
                a('s_barrier')
                if (s + 1) // 4 in (1, 2, 3, 4, 5): stamp(a, o, 1 + (s + 1) // 4)
            R = wreads(s + 1)
        M = []
        for j in range(5):
            for m in range(2):
                d = vr(acc + (m * 5 + j) * 4, 4)
                M.append(f'v_mfma_f32_16x16x32_bf16 {d}, {vr(wf[s % 2] + 4 * j, 4)}, {vr(af + 4 * ((2 * s + m) % NR), 4)}, {"0" if s == 0 else d}')
        interleave(a, M, R)
        for u in (2 * s + NPRE, 2 * s + NPRE + 1):
            if u < 48: aload(u)
    stamp(a, o, 7)
    a('s_barrier')
    a(f's_mul_i32 {sr(T[3])}, {sr(S_WAVE)}, 5120')
    a(f'v_add_u32 {vr(t0)}, {sr(T[3])}, {vr(vla)}')
    a(f's_xor_b32 {sr(T[3])}, {sr(S_WAVE)}, 1')
    a(f's_mul_i32 {sr(T[3])}, {sr(T[3])}, 5120')
    a(f'v_add_u32 {vr(t1)}, {sr(T[3])}, {vr(vla)}')
    q.drain()
    pair_reduce(a, acc, t0, t1, wf[0], 's68')
    pk = V.alloc(10, 2)
    for j in range(5):
        for hf in range(2):
            bs = b2r + 2 * j + hf
            i0 = 4 * j + 2 * hf
            a(f'v_lshlrev_b32 {vr(t0)}, 16, {vr(bs)}')
            a(f'v_and_b32 {vr(t1)}, 0xffff0000, {vr(bs)}')
            a(f'v_add_f32 {vr(t0)}, {vr(t0)}, {vr(VH + i0)}')
            a(f'v_add_f32 {vr(t1)}, {vr(t1)}, {vr(VH + i0 + 1)}')
            a(f'v_add_f32 {vr(acc + i0)}, {vr(acc + i0)}, {vr(t0)}')
            a(f'v_add_f32 {vr(acc + i0 + 1)}, {vr(acc + i0 + 1)}, {vr(t1)}')
            a(f'v_cvt_pk_bf16_f32 {vr(pk + 2 * j + hf)}, {vr(acc + i0)}, {vr(acc + i0 + 1)}')
    a(f'v_and_b32 {vr(t0)}, 15, v0')
    a(f'v_lshrrev_b32 {vr(t1)}, 4, v0')
    a(f'v_mul_u32_u24 {vr(t2)}, 0x500, {vr(t0)}')
    a(f'v_lshl_add_u32 {vr(t2)}, {vr(t1)}, 3, {vr(t2)}')
    for j in range(5):
        a(f'buffer_store_dwordx2 {vr(pk + 2 * j, 2)}, {vr(t2)}, {sr(S_OUT, 4)}, {sr(S_OUTOFF)} offen offset:{j * 32}')
    stamp(a, o, 8)

def rest(a, o):
    import s2 as S2
    S2.s2_roles(a)
    a(f's_cmp_ge_u32 {sr(S_WAVE)}, 4')
    a('s_cbranch_scc1 L_rest_loader')
    S2.s2_compute(a, o)
    s3_compute(a, o)
    V = RegAlloc(236, 1)
    for k in range(o.wreg_c, o.wreg_c + (20 - KL) * 12): V.free[k] = False
    def c_post_p1():
        from s2 import nat_addr
        vb = V.alloc(8)
        va = nat_addr(a, vb, 1280, lambda *x: (16, 4, 1))
        a(f's_mul_i32 {sr(T[0])}, {sr(S_CI)}, 160')
        a(f's_mul_i32 {sr(T[1])}, {sr(S_LW)}, {32 * 1280}')
        a(f's_add_u32 {sr(T[0])}, {sr(T[0])}, {sr(T[1])}')
        a(f's_add_u32 {sr(T[0])}, {sr(T[0])}, {W5SEQ[3] * 128 * 1280}')
        a(f's_mul_i32 {sr(T[1])}, {sr(S_LW)}, 5120')
        for n in range(5):
            a(f's_add_u32 m0, {sr(T[1])}, {3 * S5_CH + n * 1024}')
            a('s_nop 0')
            a(f'buffer_load_dwordx4 {vr(va[n])}, {sr(S_W2, 4)}, {sr(T[0])} offen lds')
        V.release(vb, 8)
    s4(a, o, V, False, o.wreg_c, post_p1=c_post_p1)
    s5_compute(a, o)
    a('s_branch L_rest_done')
    a.label('L_rest_loader')
    o.cur = -1
    S2.s2_loader_pre(a, o)
    loader345(a, o)
    a.label('L_rest_done')
```

```python
import sys
from base import *
import s1 as S1, s2 as S2, s345 as S345

def epoch_update(a, o):
    lab = a.newlabel('L_noepoch')
    a('s_cmp_lg_u32 s2, 0')
    a(f's_cbranch_scc1 {lab}')
    a(f's_cmp_lg_u32 {sr(S_WAVE)}, 4')
    a(f's_cbranch_scc1 {lab}')
    for k in range(4):
        a(f'v_lshlrev_b32 v{10 + k}, 2, v0')
        a(f'v_add_u32 v{10 + k}, {WS_FL + FL1 + 256 * k}, v{10 + k}')
    poll(a, [10, 11, 12, 13], [14, 15, 16, 17], rng=True, red=18)
    a(f's_mov_b32 {sr(T[0])}, {WS_FL + FLE}')
    set_flag(a, o, T[0])
    a.label(lab)

def build(o):
    a = Asm()
    S1.prologue(a, o)
    S1.s1(a, o)
    S345.rest(a, o)
    epoch_update(a, o)
    if o.prof == 9:
        a(('s_memrealtime' if getattr(o, 'rt', False) else 's_memtime') + ' s[98:99]')
    stamps_out(a, o)
    a.label('L_exit')
    a('s_endpgm')
    body = a.finish()
    hdr = f"""; Fused persistent kernel: LN1+QKV -> sliding-window attention -> Wo+res -> LN2+W1+GELU -> W2+res
; @launch grid=(256,1,1) block=(512,1,1) lds=163840
.amdgcn_target "amdgcn-amd-amdhsa--gfx950"
.text
.globl {NAME}_kernel
.p2align 8
.type {NAME}_kernel,@function
{NAME}_kernel:
"""
    ftr = f""".section .rodata,"a"
.p2align 6
.amdhsa_kernel {NAME}_kernel
  .amdhsa_next_free_vgpr 256
  .amdhsa_next_free_sgpr 102
  .amdhsa_accum_offset 256
  .amdhsa_group_segment_fixed_size 0
  .amdhsa_kernarg_size 88
  .amdhsa_user_sgpr_count 2
  .amdhsa_user_sgpr_kernarg_segment_ptr 1
  .amdhsa_system_sgpr_workgroup_id_x 1
.end_amdhsa_kernel
"""
    return hdr + body + ftr

if __name__ == '__main__':
    o = Opt()
    o.touchw2 = 1; o.touchwo = 1; o.wbl2 = -1; o.s5mode = 0; o.w5rate = 4; o.noput = 0; o.nofill = 0; o.touchw1 = 0; o.prio = 0; o.kvsc = ' sc1'; o.s4pre = 4; o.s5pre = 8; o.npre3 = 8; o.npre5 = 12
    for arg in sys.argv[2:]:
        if '=' in arg:
            k, v = arg.split('=')
            setattr(o, {'stop': 'stop_after'}.get(k, k), int(v))
        elif arg == 'kvplain': o.kvsc = ''
        else:
            setattr(o, arg, True)
    open(sys.argv[1], 'w').write(build(o))
    print('wrote', sys.argv[1])
```

```python
from base import *

S1_SLOT = 32768
S1_STATS = 162816
S1_CSX = 131072

def prologue(a, o):
    a.comment('---- prologue ----')
    a('s_cmp_ge_u32 s2, 256')
    a('s_cbranch_scc1 L_exit')
    if o.prof: a(('s_memrealtime' if getattr(o, 'rt', False) else 's_memtime') + ' s[80:81]')
    a('s_load_dwordx16 s[48:63], s[0:1], 0')
    a('s_load_dwordx4 s[64:67], s[0:1], 64')
    a('s_load_dwordx2 s[68:69], s[0:1], 80')
    a('v_lshrrev_b32 v1, 6, v0')
    a('v_and_b32 v0, 63, v0')
    a(f'v_readfirstlane_b32 {sr(S_WAVE)}, v1')
    a(f's_and_b32 {sr(S_TEAM)}, s2, 7')
    a(f's_getreg_b32 {sr(S_XCC)}, hwreg(HW_REG_XCC_ID, 0, 4)')
    a(f's_lshr_b32 {sr(S_MEM)}, s2, 3')
    a(f's_and_b32 {sr(S_LW)}, {sr(S_WAVE)}, 3')
    a(f's_lshl_b32 {sr(S_GW)}, {sr(S_MEM)}, 2')
    a(f's_add_u32 {sr(S_GW)}, {sr(S_GW)}, {sr(S_LW)}')
    a(f's_cmp_ge_u32 {sr(S_MEM)}, 15')
    a(f's_cselect_b32 {sr(S_RB)}, 1, 0')
    a(f's_cselect_b32 {sr(S_CB)}, 15, 0')
    a(f's_sub_u32 {sr(S_CB)}, {sr(S_MEM)}, {sr(S_CB)}')
    a(f's_cmp_ge_u32 {sr(S_MEM)}, 30')
    lab = a.newlabel('L_nospare')
    a(f's_cbranch_scc0 {lab}')
    a(f's_sub_u32 {sr(S_RB)}, {sr(S_MEM)}, 30')
    a(f's_mov_b32 {sr(S_CB)}, 15')
    a.label(lab)
    a(f's_lshl_b32 s73, {sr(S_TEAM)}, 1')
    a(f's_add_u32 {sr(S_RB)}, {sr(S_RB)}, s73')
    a('s_waitcnt lgkmcnt(0)')
    a(f's_load_dword {sr(S_EPOCH)}, s[68:69], {WS_FL + FLE}')
    def srd(d, p, size):
        a(f's_mov_b32 {sr(d)}, {sr(p)}')
        a(f's_and_b32 {sr(d + 1)}, {sr(p + 1)}, 0xffff')
        a(f's_mov_b32 {sr(d + 2)}, {size}')
        a(f's_mov_b32 {sr(d + 3)}, 0x00020000')
    srd(S_X, 48, 2048 * 640 * 2)
    srd(S_WQKV, 50, 640 * 1920 * 2)
    srd(S_WO, 52, 640 * 640 * 2)
    srd(S_W1, 56, 640 * 1536 * 2)
    srd(S_B1, 58, 1536 * 2)
    srd(S_W2, 60, 1536 * 640 * 2)
    srd(S_B2, 62, 640 * 2)
    srd(S_OUT, 64, 2048 * 640 * 2)
    srd(S_WS, 68, WS_SIZE)
    a(f's_mov_b32 {sr(S_ONES)}, 0x3f803f80')

def make_tag(a):
    a(f's_mul_i32 {sr(S_TAG)}, {sr(S_EPOCH)}, 0x9E3779B1')
    a(f's_add_u32 {sr(S_TAG)}, {sr(S_TAG)}, 1')

S1_RT = 132096

def row_stats(a, o, with_job=False):
    a.comment('LN1 row stats (+ retile job)')
    V = RegAlloc(200, 1)
    raw = V.alloc(10, 2); x = V.alloc(20); t0, t1, sm, m2 = [V.alloc() for _ in range(4)]; st = V.alloc(2, 2)
    a(f'v_lshrrev_b32 {vr(t0)}, 5, v0')
    a(f'v_mul_u32_u24 {vr(t0)}, 0x500, {vr(t0)}')
    a(f'v_and_b32 {vr(t1)}, 31, v0')
    a(f'v_lshl_add_u32 {vr(t0)}, {vr(t1)}, 3, {vr(t0)}')
    a(f's_lshl_b32 {sr(T[0])}, {sr(S_TEAM)}, 8')
    a(f's_lshl_b32 {sr(T[1])}, {sr(S_GW)}, 1')
    a(f's_add_u32 {sr(T[0])}, {sr(T[0])}, {sr(T[1])}')
    a(f's_mul_i32 {sr(T[1])}, {sr(T[0])}, 1280')
    for i in range(5):
        a(f'buffer_load_dwordx2 {vr(raw + 2 * i, 2)}, {vr(t0)}, {sr(S_X, 4)}, {sr(T[1])} offen offset:{i * 256}')
    a('s_waitcnt vmcnt(0)')
    for i in range(10):
        a(f'v_lshlrev_b32 {vr(x + 2 * i)}, 16, {vr(raw + i)}')
        a(f'v_and_b32 {vr(x + 2 * i + 1)}, 0xffff0000, {vr(raw + i)}')
    def red32(acc):
        for sh in (8, 4, 2, 1):
            a(f'v_add_f32_dpp {vr(acc)}, {vr(acc)}, {vr(acc)} row_ror:{sh} row_mask:0xf bank_mask:0xf')
        a(f'v_mov_b32 {vr(t0)}, {vr(acc)}')
        a(f'v_permlane16_swap_b32 {vr(t0)}, {vr(acc)}')
        a(f'v_add_f32 {vr(acc)}, {vr(acc)}, {vr(t0)}')
    a(f'v_add_f32 {vr(sm)}, {vr(x)}, {vr(x + 1)}')
    for i in range(2, 20): a(f'v_add_f32 {vr(sm)}, {vr(sm)}, {vr(x + i)}')
    red32(sm)
    a(f'v_mul_f32 {vr(sm)}, {f2u(1.0 / 640.0):#x}, {vr(sm)}')
    for i in range(20):
        a(f'v_sub_f32 {vr(x + i)}, {vr(x + i)}, {vr(sm)}')
        if i == 0: a(f'v_mul_f32 {vr(m2)}, {vr(x)}, {vr(x)}')
        else: a(f'v_fmac_f32 {vr(m2)}, {vr(x + i)}, {vr(x + i)}')
    red32(m2)
    a(f'v_mov_b32 {vr(t1)}, {f2u(1e-5):#x}')
    a(f'v_fmac_f32 {vr(t1)}, {f2u(1.0 / 640.0):#x}, {vr(m2)}')
    a(f'v_rsq_f32 {vr(st)}, {vr(t1)}')
    a(f'v_mul_f32 {vr(st + 1)}, {vr(sm)}, {vr(st)}')
    a(f'v_sub_f32 {vr(st + 1)}, 0, {vr(st + 1)}')
    a(f'v_lshrrev_b32 {vr(t0)}, 5, v0')
    a(f'v_lshlrev_b32 {vr(t0)}, 3, {vr(t0)}')
    a(f'v_and_b32 {vr(t1)}, 31, v0')
    a(f'v_mov_b32 {vr(sm)}, {OOB:#x}')
    a(f'v_cmp_eq_u32 vcc, 0, {vr(t1)}')
    a(f'v_cndmask_b32 {vr(t0)}, {vr(sm)}, {vr(t0)}, vcc')
    a(f's_lshl_b32 {sr(T[0])}, {sr(T[0])}, 3')
    a(f's_add_u32 {sr(T[0])}, {sr(T[0])}, {WS_ST1}')
    a(f'buffer_store_dwordx2 {vr(st, 2)}, {vr(t0)}, {sr(S_WS, 4)}, {sr(T[0])} offen sc1')

RT_S = (64, 65, 66, 67, 68, 69, 70)
def rt_job_issue(a, o, V, stage=S1_RT):
    S_S, S_C, S_D, S_NS, S_MG, S_BASE, S_PITCH = RT_S
    vo, vt, ad, vl = [V.alloc() for _ in range(4)]
    d = V.alloc(16, 4)
    a(f's_mov_b32 {sr(T[2])}, s2')
    a(f's_lshl_b32 {sr(T[2])}, {sr(T[2])}, 2')
    a(f's_add_u32 {sr(T[2])}, {sr(T[2])}, {sr(S_LW)}')
    a(f's_cmp_lt_u32 {sr(T[2])}, 480')
    for k in range(3):
        a(f's_cselect_b32 s{S_SRD2 + k}, {sr(S_W2 + k)}, {sr(S_W1 + k)}')
    a(f's_mov_b32 s{S_SRD2 + 3}, 0x00020000')
    a(f's_cselect_b32 {sr(S_D)}, 5, 3')
    a(f's_cselect_b32 {sr(S_NS)}, 48, 20')
    scsel(a, sr(S_MG), 205, 342)
    scsel(a, sr(S_BASE), WS_WT5, WS_WT4)
    scsel(a, sr(S_PITCH), 1280, 3072)
    scsel(a, sr(T[3]), 6554, 2731)
    a(f's_cselect_b32 {sr(T[4])}, 10, 24')
    scsel(a, sr(T[5]), 0, 480)
    a(f's_sub_u32 {sr(T[2])}, {sr(T[2])}, {sr(T[5])}')
    a(f's_mul_i32 {sr(S_S)}, {sr(T[2])}, {sr(T[3])}')
    a(f's_lshr_b32 {sr(S_S)}, {sr(S_S)}, 16')
    a(f's_mul_i32 {sr(T[4])}, {sr(S_S)}, {sr(T[4])}')
    a(f's_sub_u32 {sr(S_C)}, {sr(T[2])}, {sr(T[4])}')
    a(f's_cmp_ge_u32 {sr(T[2])}, 480')
    a(f's_cselect_b32 {sr(S_BASE)}, {OOB:#x}, {sr(S_BASE)}')
    a(f'v_lshrrev_b32 {vr(vt)}, 3, v0')
    a(f'v_mul_lo_u32 {vr(vt)}, {vr(vt)}, {sr(S_PITCH)}')
    a(f'v_and_b32 {vr(vo)}, 7, v0')
    a(f'v_lshl_add_u32 {vr(vo)}, {vr(vo)}, 4, {vr(vt)}')
    a(f's_lshl_b32 {sr(T[2])}, {sr(S_S)}, 5')
    a(f's_mul_i32 {sr(T[2])}, {sr(T[2])}, {sr(S_PITCH)}')
    a(f's_lshl_b32 {sr(T[3])}, {sr(S_C)}, 7')
    a(f's_add_u32 {sr(T[2])}, {sr(T[2])}, {sr(T[3])}')
    a(f's_lshl_b32 {sr(T[3])}, {sr(S_PITCH)}, 3')
    a(f's_lshl_b32 {sr(T[4])}, {sr(S_LW)}, 12')
    a(f's_add_u32 {sr(T[4])}, {sr(T[4])}, {stage}')
    for i in range(4):
        a(f's_add_u32 m0, {sr(T[4])}, {i * 1024}')
        a('s_nop 0')
        a(f'buffer_load_dwordx4 {vr(vo)}, {sr(S_SRD2, 4)}, {sr(T[2])} offen lds')
        if i < 3: a(f's_add_u32 {sr(T[2])}, {sr(T[2])}, {sr(T[3])}')
    a(f'v_lshrrev_b32 {vr(vt)}, 4, v0')
    a(f'v_lshlrev_b32 {vr(vt)}, 2, {vr(vt)}')
    a(f'v_bfe_u32 {vr(ad)}, v0, 2, 2')
    a(f'v_add_u32 {vr(vt)}, {vr(vt)}, {vr(ad)}')
    a(f'v_lshlrev_b32 {vr(vt)}, 7, {vr(vt)}')
    a(f'v_and_b32 {vr(ad)}, 3, v0')
    a(f'v_lshl_add_u32 {vr(vt)}, {vr(ad)}, 3, {vr(vt)}')
    a(f'v_add_u32 {vr(ad)}, {sr(T[4])}, {vr(vt)}')
    a(f'v_lshlrev_b32 {vr(vl)}, 4, v0')
    return (ad, vl, d)

def rt_job_finish(a, o, st, TT=None):
    ad, vl, d = st
    S_S, S_C, S_D, S_NS, S_MG, S_BASE, S_PITCH = RT_S
    for jj in range(4):
        a(f'ds_read_b64_tr_b16 {vr(d + 4 * jj, 2)}, {vr(ad)} offset:{jj * 32}')
        a(f'ds_read_b64_tr_b16 {vr(d + 4 * jj + 2, 2)}, {vr(ad)} offset:{jj * 32 + 16 * 128}')
    a('s_waitcnt lgkmcnt(0)')
    for jj in range(4):
        a(f's_lshl_b32 {sr(T[2])}, {sr(S_C)}, 2')
        a(f's_add_u32 {sr(T[2])}, {sr(T[2])}, {jj}')
        a(f's_mul_i32 {sr(T[3])}, {sr(T[2])}, {sr(S_MG)}')
        a(f's_lshr_b32 {sr(T[3])}, {sr(T[3])}, 10')
        a(f's_mul_i32 {sr(T[4])}, {sr(T[3])}, {sr(S_D)}')
        a(f's_sub_u32 {sr(T[4])}, {sr(T[2])}, {sr(T[4])}')
        a(f's_mul_i32 {sr(T[3])}, {sr(T[3])}, {sr(S_NS)}')
        a(f's_add_u32 {sr(T[3])}, {sr(T[3])}, {sr(S_S)}')
        a(f's_mul_i32 {sr(T[3])}, {sr(T[3])}, {sr(S_D)}')
        a(f's_add_u32 {sr(T[3])}, {sr(T[3])}, {sr(T[4])}')
        a(f's_lshl_b32 {sr(T[3])}, {sr(T[3])}, 10')
        a(f's_add_u32 {sr(T[3])}, {sr(T[3])}, {sr(S_BASE)}')
        a(f'buffer_store_dwordx4 {vr(d + 4 * jj, 4)}, {vr(vl)}, {sr(S_WS, 4)}, {sr(T[3])} offen sc1')


def fls_flag(a, o, v1=1, v2=2):
    a(f's_lshl_b32 {sr(T[6])}, {sr(S_TEAM)}, 7')
    a(f's_add_u32 {sr(T[6])}, {sr(T[6])}, {sr(S_GW)}')
    a(f's_lshl_b32 {sr(T[6])}, {sr(T[6])}, 2')
    a(f's_add_u32 {sr(T[6])}, {sr(T[6])}, {WS_FL + FLS}')
    set_flag(a, o, T[6], v1=v1, v2=v2)

def s1_loader(a, o):
    a.comment('---- S1 loader ----')
    V = RegAlloc(256, 1)
    vA = [V.alloc() for _ in range(2)]
    vW = [V.alloc() for _ in range(2)]
    t0, t1, t2, t3 = [V.alloc() for _ in range(4)]
    a(f'v_lshrrev_b32 {vr(t0)}, 3, v0')
    a(f'v_mul_u32_u24 {vr(t0)}, 0x500, {vr(t0)}')
    a(f'v_lshrrev_b32 {vr(t1)}, 4, v0')
    a(f'v_and_b32 {vr(t2)}, 7, v0')
    for par in range(2):
        a(f'v_add_u32 {vr(t3)}, {4 * par}, {vr(t1)}')
        a(f'v_xor_b32 {vr(t3)}, {vr(t2)}, {vr(t3)}')
        a(f'v_lshl_add_u32 {vr(vA[par])}, {vr(t3)}, 4, {vr(t0)}')
    a(f'v_mul_u32_u24 {vr(t0)}, 0xf00, {vr(t1)}')
    a(f'v_and_b32 {vr(t2)}, 15, v0')
    for v in range(2):
        a(f'v_or_b32 {vr(t3)}, {4 * v}, {vr(t1)}')
        a(f'v_lshlrev_b32 {vr(t3)}, 1, {vr(t3)}')
        a(f'v_xor_b32 {vr(t3)}, {vr(t2)}, {vr(t3)}')
        a(f'v_lshl_add_u32 {vr(vW[v])}, {vr(t3)}, 4, {vr(t0)}')
    sA, sW, sLA, sLW, tmp = T[0], T[1], T[2], T[3], T[4]
    S_KA, S_KW, sAc, sWc = 60, 61, 62, 63
    a(f's_lshl_b32 {sr(sA)}, {sr(S_RB)}, 7')
    a(f's_lshl_b32 {sr(tmp)}, {sr(S_LW)}, 5')
    a(f's_add_u32 {sr(sA)}, {sr(sA)}, {sr(tmp)}')
    a(f's_mul_i32 {sr(sA)}, {sr(sA)}, 1280')
    a(f's_mul_i32 {sr(sW)}, {sr(S_LW)}, {16 * 3840}')
    a(f's_lshl_b32 {sr(tmp)}, {sr(S_CB)}, 8')
    a(f's_add_u32 {sr(sW)}, {sr(sW)}, {sr(tmp)}')
    a(f's_lshl_b32 {sr(sLA)}, {sr(S_LW)}, 12')
    a(f's_add_u32 {sr(sLW)}, {sr(sLA)}, 16384')
    a(f's_mul_i32 {sr(S_KA)}, {sr(S_TEAM)}, 10')
    a(f's_lshr_b32 {sr(S_KA)}, {sr(S_KA)}, 3')
    a(f's_mul_i32 {sr(S_KW)}, {sr(S_KA)}, 245760')
    a(f's_lshl_b32 {sr(S_KA)}, {sr(S_KA)}, 7')
    q = VQ(a)
    def issue(c):
        slot = (c % 4) * S1_SLOT
        a(f's_add_u32 {sr(sAc)}, {sr(sA)}, {sr(S_KA)}')
        a(f's_add_u32 {sr(sWc)}, {sr(sW)}, {sr(S_KW)}')
        for i in range(4):
            a(f's_add_u32 m0, {sr(sLA)}, {slot + i * 1024}')
            a(f's_add_u32 {sr(tmp)}, {sr(sAc)}, {i * 8 * 1280}')
            a(f'buffer_load_dwordx4 {vr(vA[i & 1])}, {sr(S_X, 4)}, {sr(tmp)} offen lds')
        for i in range(4):
            a(f's_add_u32 m0, {sr(sLW)}, {slot + i * 1024}')
            a(f's_add_u32 {sr(tmp)}, {sr(sWc)}, {4 * i * 3840}')
            a(f'buffer_load_dwordx4 {vr(vW[i >> 1])}, {sr(S_WQKV, 4)}, {sr(tmp)} offen lds')
        a(f's_add_u32 {sr(S_KA)}, {sr(S_KA)}, 128')
        a(f's_add_u32 {sr(S_KW)}, {sr(S_KW)}, 245760')
        a(f's_cmp_eq_u32 {sr(S_KA)}, 1280')
        a(f's_cselect_b32 {sr(S_KA)}, 0, {sr(S_KA)}')
        a(f's_cselect_b32 {sr(S_KW)}, 0, {sr(S_KW)}')
        q.add(('c', c), 8)
    stamp(a, o, 1)
    issue(0); issue(1)
    stamp(a, o, 2)
    for c in range(10):
        q.wait(('c', c))
        a('s_barrier')
        if c in (0, 1, 3, 5, 9): stamp(a, o, {0: 3, 1: 4, 3: 5, 5: 6, 9: 7}[c])
        if c == 0: issue(2); issue(3)
        if 1 <= c <= 6: issue(c + 3)
        if c == 8 and o.touchwo:
            touch(a, S_WO, 54, 1, lambda d: a(f's_mov_b32 {sr(d)}, {sr(S_GW)}'), t2, 250, T[5])
        if c == 7:
            a('s_waitcnt lgkmcnt(0)')
            make_tag(a)
            lab = if_wave(a, 7)
            flx_flag(a, o)
            a.label(lab)
            lab = if_wave(a, 4)
            a(f's_and_b32 {sr(tmp)}, {sr(S_RB)}, 1')
            a(f's_lshl_b32 {sr(tmp)}, {sr(tmp)}, 6')
            a(f's_lshl_b32 {sr(sAc)}, {sr(S_TEAM)}, 7')
            a(f's_add_u32 {sr(tmp)}, {sr(tmp)}, {sr(sAc)}')
            a(f's_lshl_b32 {sr(tmp)}, {sr(tmp)}, 2')
            a(f's_add_u32 {sr(tmp)}, {sr(tmp)}, {WS_FL + FLS}')
            a(f'v_lshl_add_u32 {vr(t0)}, v0, 2, {sr(tmp)}')
            poll(a, [t0], [t1])
            a(f'v_lshlrev_b32 {vr(t0)}, 4, v0')
            a(f's_lshl_b32 {sr(tmp)}, {sr(S_RB)}, 10')
            a(f's_add_u32 {sr(tmp)}, {sr(tmp)}, {WS_ST1}')
            a(f's_mov_b32 m0, {S1_STATS}')
            a('s_nop 0')
            a(f'buffer_load_dwordx4 {vr(t0)}, {sr(S_WS, 4)}, {sr(tmp)} offen sc1 lds')
            a.label(lab)
    q.drain()
    a('s_barrier')
    stamp(a, o, 8)
    a('s_barrier')
    stamp(a, o, 9)

RT_N = 8
def s1_spare(a, o):
    a.comment('---- S1 spare WG: retile w1, w2 ----')
    V = RegAlloc(200, 40)
    S_SW, S_J, S_S, S_C, S_D, S_NS, S_MG, S_BASE = 60, 61, 62, 63, 64, 65, 66, 67
    vo1, vo2, vsel, tA, tB, vl, ad = [V.alloc() for _ in range(7)]
    d = [V.alloc(16, 4) for _ in range(2)]
    a(f's_lshl_b32 {sr(S_SW)}, {sr(S_RB)}, 3')
    a(f's_add_u32 {sr(S_SW)}, {sr(S_SW)}, {sr(S_WAVE)}')
    a(f'v_lshrrev_b32 {vr(tA)}, 3, v0')
    a(f'v_and_b32 {vr(tB)}, 7, v0')
    a(f'v_lshlrev_b32 {vr(tB)}, 4, {vr(tB)}')
    a(f'v_mov_b32 {vr(vl)}, 3072')
    a(f'v_mad_u32_u24 {vr(vo1)}, {vr(tA)}, {vr(vl)}, {vr(tB)}')
    a(f'v_mov_b32 {vr(vl)}, 1280')
    a(f'v_mad_u32_u24 {vr(vo2)}, {vr(tA)}, {vr(vl)}, {vr(tB)}')
    a(f'v_lshlrev_b32 {vr(vl)}, 4, v0')
    a(f's_lshl_b32 {sr(T[0])}, {sr(S_WAVE)}, 14')
    a(f'v_lshrrev_b32 {vr(tA)}, 4, v0')
    a(f'v_lshlrev_b32 {vr(tA)}, 2, {vr(tA)}')
    a(f'v_bfe_u32 {vr(tB)}, v0, 2, 2')
    a(f'v_add_u32 {vr(tA)}, {vr(tA)}, {vr(tB)}')
    a(f'v_lshlrev_b32 {vr(tA)}, 7, {vr(tA)}')
    a(f'v_and_b32 {vr(tB)}, 3, v0')
    a(f'v_lshl_add_u32 {vr(tA)}, {vr(tB)}, 3, {vr(tA)}')
    a(f'v_add_u32 {vr(ad)}, {sr(T[0])}, {vr(tA)}')
    q = VQ(a)
    def kind(n):
        lo, hi = 128 * n, 128 * n + 127
        if hi < 480: return 1
        if lo >= 480: return 2
        return 0
    def job(n):
        a(f's_add_u32 {sr(S_J)}, {sr(S_SW)}, {128 * n}')
        a(f's_cmp_lt_u32 {sr(S_J)}, 480')
        a(f's_cselect_b32 {sr(S_D)}, 3, 5')
        a(f's_cselect_b32 {sr(S_NS)}, 20, 48')
        scsel(a, sr(S_MG), 342, 205)
        scsel(a, sr(S_BASE), WS_WT4, WS_WT5)
        scsel(a, sr(T[1]), 2731, 6554)
        a(f's_cselect_b32 {sr(T[2])}, 24, 10')
        scsel(a, sr(T[3]), 0, 480)
        a(f's_sub_u32 {sr(T[3])}, {sr(S_J)}, {sr(T[3])}')
        a(f's_mul_i32 {sr(S_S)}, {sr(T[3])}, {sr(T[1])}')
        a(f's_lshr_b32 {sr(S_S)}, {sr(S_S)}, 16')
        a(f's_mul_i32 {sr(T[2])}, {sr(S_S)}, {sr(T[2])}')
        a(f's_sub_u32 {sr(S_C)}, {sr(T[3])}, {sr(T[2])}')
        a(f's_cmp_ge_u32 {sr(S_J)}, 960')
        a(f's_cselect_b32 {sr(S_BASE)}, {OOB:#x}, {sr(S_BASE)}')
    def issue(n):
        job(n)
        k = kind(n)
        a(f's_cmp_lt_u32 {sr(S_J)}, 480')
        for i in range(3):
            a(f's_cselect_b32 s{S_SRD2 + i}, {sr(S_W1 + i)}, {sr(S_W2 + i)}')
        a(f's_mov_b32 s{S_SRD2 + 3}, 0x00020000')
        scsel(a, sr(T[1]), 3072, 1280)
        if k == 1: vv = vo1
        elif k == 2: vv = vo2
        else:
            a('s_cselect_b64 s[70:71], -1, 0')
            a(f'v_cndmask_b32 {vr(vsel)}, {vr(vo2)}, {vr(vo1)}, s[70:71]'); vv = vsel
        a(f's_lshl_b32 {sr(T[2])}, {sr(S_S)}, 5')
        a(f's_mul_i32 {sr(T[2])}, {sr(T[2])}, {sr(T[1])}')
        a(f's_lshl_b32 {sr(T[3])}, {sr(S_C)}, 7')
        a(f's_add_u32 {sr(T[2])}, {sr(T[2])}, {sr(T[3])}')
        a(f's_lshl_b32 {sr(T[1])}, {sr(T[1])}, 3')
        for i in range(4):
            a(f's_add_u32 m0, {sr(T[0])}, {(n % 4) * 4096 + i * 1024}')
            a('s_nop 0')
            a(f'buffer_load_dwordx4 {vr(vv)}, {sr(S_SRD2, 4)}, {sr(T[2])} offen lds')
            if i < 3: a(f's_add_u32 {sr(T[2])}, {sr(T[2])}, {sr(T[1])}')
        q.add(('j', n), 4)
    def process(n):
        job(n)
        dd = d[n % 2]
        for jj in range(4):
            a(f'ds_read_b64_tr_b16 {vr(dd + 4 * jj, 2)}, {vr(ad)} offset:{(n % 4) * 4096 + jj * 32}')
            a(f'ds_read_b64_tr_b16 {vr(dd + 4 * jj + 2, 2)}, {vr(ad)} offset:{(n % 4) * 4096 + jj * 32 + 16 * 128}')
        a('s_waitcnt lgkmcnt(0)')
        for jj in range(4):
            a(f's_lshl_b32 {sr(T[6])}, {sr(S_C)}, 2')
            a(f's_add_u32 {sr(T[6])}, {sr(T[6])}, {jj}')
            a(f's_mul_i32 {sr(T[3])}, {sr(T[6])}, {sr(S_MG)}')
            a(f's_lshr_b32 {sr(T[3])}, {sr(T[3])}, 10')
            a(f's_mul_i32 {sr(T[4])}, {sr(T[3])}, {sr(S_D)}')
            a(f's_sub_u32 {sr(T[4])}, {sr(T[6])}, {sr(T[4])}')
            a(f's_mul_i32 {sr(T[3])}, {sr(T[3])}, {sr(S_NS)}')
            a(f's_add_u32 {sr(T[3])}, {sr(T[3])}, {sr(S_S)}')
            a(f's_mul_i32 {sr(T[3])}, {sr(T[3])}, {sr(S_D)}')
            a(f's_add_u32 {sr(T[3])}, {sr(T[3])}, {sr(T[4])}')
            a(f's_lshl_b32 {sr(T[3])}, {sr(T[3])}, 10')
            a(f's_add_u32 {sr(T[3])}, {sr(T[3])}, {sr(S_BASE)}')
            a(f'buffer_store_dwordx4 {vr(dd + 4 * jj, 4)}, {vr(vl)}, {sr(S_WS, 4)}, {sr(T[3])} offen sc1')
        q.add(('s', n), 4)
    for n in range(4): issue(n)
    a('s_waitcnt lgkmcnt(0)')
    make_tag(a)
    lab = if_wave(a, 7)
    fl1_flag(a, o)
    flx_flag(a, o)
    a.label(lab)
    for n in range(RT_N):
        q.wait(('j', n))
        process(n)
        if n + 4 < RT_N: issue(n + 4)
        if n == 0:
            lab = a.newlabel('L_spfls')
            a(f's_cmp_ge_u32 {sr(S_WAVE)}, 4')
            a(f's_cbranch_scc1 {lab}')
            fls_flag(a, o, v1=1, v2=2)
            a.label(lab)
        if n == 5:
            q.wait(('s', 3))
            a('s_barrier')
            lab = if_wave(a, 0)
            a(f's_lshl_b32 {sr(T[6])}, {sr(S_RB)}, 2')
            a(f's_add_u32 {sr(T[6])}, {sr(T[6])}, {WS_FL + FLR}')
            set_flag(a, o, T[6])
            a.label(lab)
    q.drain()
    a('s_barrier')
    lab = if_wave(a, 0)
    a(f's_lshl_b32 {sr(T[6])}, {sr(S_RB)}, 2')
    a(f's_add_u32 {sr(T[6])}, {sr(T[6])}, {WS_FL + FLR + 0x100}')
    set_flag(a, o, T[6])
    a.label(lab)

def flx_flag(a, o):
    a(f's_lshl_b32 {sr(T[6])}, {sr(S_TEAM)}, 5')
    a(f's_add_u32 {sr(T[6])}, {sr(T[6])}, {sr(S_MEM)}')
    a(f's_lshl_b32 {sr(T[6])}, {sr(T[6])}, 2')
    a(f's_add_u32 {sr(T[6])}, {sr(T[6])}, {WS_FL + FLX}')
    a(f's_add_u32 {sr(T[7])}, {sr(S_TAG)}, {sr(S_XCC)}')
    set_flag(a, o, T[6], val=T[7], v1=5, v2=6)

def fl1_flag(a, o):
    a(f's_lshl_b32 {sr(T[6])}, {sr(S_RB)}, 4')
    a(f's_add_u32 {sr(T[6])}, {sr(T[6])}, {sr(S_CB)}')
    a(f's_lshl_b32 {sr(T[6])}, {sr(T[6])}, 2')
    a(f's_add_u32 {sr(T[6])}, {sr(T[6])}, {WS_FL + FL1}')
    a(f's_add_u32 {sr(T[7])}, {sr(S_TAG)}, {sr(S_XCC)}')
    set_flag(a, o, T[6], val=T[7])

def s1_compute(a, o, vtype):
    a.comment(f'---- S1 compute (vtype={vtype}) ----')
    V = RegAlloc(256, 1)
    acc = V.alloc(64, 4)
    cs = V.alloc(16, 4)
    ones = V.alloc(4, 4)
    fX = [V.alloc(16, 4) for _ in range(2)]
    fW = [V.alloc(16, 4) for _ in range(2)]
    aad = [[V.alloc() for _ in range(2)] for _ in range(2)]
    wad = [[V.alloc() for _ in range(4)] for _ in range(2)]
    t0, t1, t2, t3, t4 = [V.alloc() for _ in range(5)]
    swm, swn = T[0], T[1]
    snt = [60, 61, 62, 63]
    a(f's_lshr_b32 {sr(swm)}, {sr(S_WAVE)}, 1')
    a(f's_and_b32 {sr(swn)}, {sr(S_WAVE)}, 1')
    for k in range(4):
        a(f's_lshl_b32 {sr(snt[k])}, {sr(swm)}, 1')
        a(f's_add_u32 {sr(snt[k])}, {sr(snt[k])}, {k}')
        a(f's_and_b32 {sr(snt[k])}, {sr(snt[k])}, 3')
    a('v_and_b32 %s, 15, v0' % vr(t0))
    a('v_lshrrev_b32 %s, 4, v0' % vr(t1))
    a('v_bfe_u32 %s, v0, 1, 3' % vr(t2))
    a(f's_lshl_b32 {sr(T[2])}, {sr(swm)}, 13')
    a(f'v_lshl_add_u32 {vr(t3)}, {vr(t0)}, 7, {sr(T[2])}')
    for ks in range(2):
        a(f'v_add_u32 {vr(t4)}, {4 * ks}, {vr(t1)}')
        a(f'v_xor_b32 {vr(t4)}, {vr(t4)}, {vr(t2)}')
        a(f'v_lshl_add_u32 {vr(aad[0][ks])}, {vr(t4)}, 4, {vr(t3)}')
        a(f'v_add_u32 {vr(aad[1][ks])}, 0x10000, {vr(aad[0][ks])}')
    a(f'v_bfe_u32 {vr(t2)}, v0, 2, 2')
    a(f'v_lshl_add_u32 {vr(t3)}, {vr(t1)}, 3, {vr(t2)}')
    a(f'v_lshlrev_b32 {vr(t3)}, 8, {vr(t3)}')
    a(f'v_and_b32 {vr(t4)}, 1, v0')
    a(f'v_lshl_add_u32 {vr(t3)}, {vr(t4)}, 3, {vr(t3)}')
    a(f'v_add_u32 {vr(t3)}, 0x4000, {vr(t3)}')
    a(f'v_and_b32 {vr(t4)}, 1, {vr(t1)}')
    a(f'v_lshl_or_b32 {vr(t2)}, {vr(t4)}, 2, {vr(t2)}')
    a(f'v_lshlrev_b32 {vr(t2)}, 1, {vr(t2)}')
    a(f'v_bfe_u32 {vr(t4)}, v0, 1, 1')
    a(f's_lshl_b32 {sr(T[2])}, {sr(swn)}, 3')
    a(f'v_add_u32 {vr(t4)}, {sr(T[2])}, {vr(t4)}')
    for nt in range(4):
        a(f's_lshl_b32 {sr(T[3])}, {sr(snt[nt])}, 1')
        a(f'v_add_u32 {vr(wad[0][nt])}, {sr(T[3])}, {vr(t4)}')
        a(f'v_xor_b32 {vr(wad[0][nt])}, {vr(wad[0][nt])}, {vr(t2)}')
        a(f'v_lshl_add_u32 {vr(wad[0][nt])}, {vr(wad[0][nt])}, 4, {vr(t3)}')
        a(f'v_add_u32 {vr(wad[1][nt])}, 0x10000, {vr(wad[0][nt])}')
    for i in range(4):
        a(f'v_mov_b32 {vr(ones + i)}, {sr(S_ONES)}')
    def reads(t):
        c, ks = t // 2, t % 2
        slot = c % 4
        half, off = slot // 2, (slot % 2) * S1_SLOT
        s = t % 2
        L = []
        for mt in range(4):
            L.append(f'ds_read_b128 {vr(fX[s] + 4 * mt, 4)}, {vr(aad[half][ks])} offset:{off + mt * 2048}')
        for nt in range(4):
            L.append(f'ds_read_b64_tr_b16 {vr(fW[s] + 4 * nt, 2)}, {vr(wad[half][nt])} offset:{off + ks * 8192}')
            L.append(f'ds_read_b64_tr_b16 {vr(fW[s] + 4 * nt + 2, 2)}, {vr(wad[half][nt])} offset:{off + ks * 8192 + 1024}')
        return L
    def mfmas(t):
        s = t % 2
        L = []
        first = (t == 0)
        for nt in range(4):
            for mt in range(4):
                d = vr(acc + (mt * 4 + nt) * 4, 4)
                X, W = vr(fX[s] + 4 * mt, 4), vr(fW[s] + 4 * nt, 4)
                A, B = (X, W) if vtype else (W, X)
                L.append(f'v_mfma_f32_16x16x32_bf16 {d}, {A}, {B}, {"0" if first else d}')
            if nt < 2:
                d = vr(cs + 4 * nt, 4)
                W = vr(fW[s] + 4 * nt, 4); O = vr(ones, 4)
                A, B = (O, W) if vtype else (W, O)
                L.append(f'v_mfma_f32_16x16x32_bf16 {d}, {A}, {B}, {"0" if first else d}')
        return L
    stamp(a, o, 2)
    a('s_barrier')
    stamp(a, o, 3)
    for r in reads(0): a(r)
    for t in range(20):
        a('s_waitcnt lgkmcnt(0)')
        if t == 0: make_tag(a)
        R = []
        if t + 1 < 20:
            if (t + 1) % 2 == 0:
                a('s_barrier')
                c1 = (t + 1) // 2
                if c1 in (1, 3, 5, 9): stamp(a, o, {1: 4, 3: 5, 5: 6, 9: 7}[c1])
            R = reads(t + 1)
        if t == 6:
            a('s_waitcnt vmcnt(0)')
            fls_flag(a, o, v1=t0, v2=t1)
        interleave(a, mfmas(t), R)
    a(f's_lshl_b32 {sr(T[2])}, {sr(swn)}, 8')
    a(f's_add_u32 {sr(T[2])}, {sr(T[2])}, {S1_CSX}')
    csad = V.alloc()
    if not vtype:
        a(f'v_lshrrev_b32 {vr(t1)}, 4, v0')
        a(f'v_lshl_add_u32 {vr(csad)}, {vr(t1)}, 4, {sr(T[2])}')
    else:
        a(f'v_and_b32 {vr(t1)}, 15, v0')
        a(f'v_lshl_add_u32 {vr(csad)}, {vr(t1)}, 2, {sr(T[2])}')
    csa = V.alloc(4)
    for nt in range(4):
        a(f's_lshl_b32 {sr(T[3])}, {sr(snt[nt])}, 6')
        a(f'v_add_u32 {vr(csa + nt)}, {sr(T[3])}, {vr(csad)}')
    for nt in range(2):
        if not vtype: a(f'ds_write_b128 {vr(csa + nt)}, {vr(cs + 4 * nt, 4)}')
        else: a(f'ds_write_b32 {vr(csa + nt)}, {vr(cs + 4 * nt)}')
    a('s_waitcnt lgkmcnt(0)')
    a('s_barrier')
    stamp(a, o, 8)
    for nt in range(2, 4):
        if not vtype: a(f'ds_read_b128 {vr(cs + 4 * nt, 4)}, {vr(csa + nt)}')
        else: a(f'ds_read_b32 {vr(cs + 4 * nt)}, {vr(csa + nt)}')
    stt = V.alloc(32, 4)
    sad = V.alloc(4)
    if not vtype:
        a(f'v_and_b32 {vr(t0)}, 15, v0')
        a(f's_lshl_b32 {sr(T[2])}, {sr(swm)}, 9')
        a(f's_add_u32 {sr(T[2])}, {sr(T[2])}, {S1_STATS}')
        a(f'v_lshl_add_u32 {vr(t0)}, {vr(t0)}, 3, {sr(T[2])}')
        for mt in range(4):
            a(f'ds_read_b64 {vr(stt + 2 * mt, 2)}, {vr(t0)} offset:{mt * 128}')
        a(f's_cmp_lt_u32 {sr(S_CB)}, 5')
        a(f's_cselect_b32 {sr(T[3])}, {f2u(QSCALE):#x}, 1.0')
        a(f's_lshl_b32 {sr(T[2])}, {sr(S_CB)}, 5')
        a(f's_lshl_b32 {sr(T[4])}, {sr(swn)}, 4')
        a(f's_add_u32 {sr(T[2])}, {sr(T[2])}, {sr(T[4])}')
        a(f'v_lshrrev_b32 {vr(t1)}, 4, v0')
        a(f'v_add_u32 {vr(t1)}, {sr(T[2])}, {vr(t1)}')
        a(f'v_and_b32 {vr(t0)}, 15, v0')
        a(f'v_lshlrev_b32 {vr(t0)}, 3, {vr(t0)}')
        a(f's_mov_b32 {sr(T[4])}, {HEADB}')
        for nt in range(4):
            a(f's_lshl_b32 {sr(T[5])}, {sr(snt[nt])}, 2')
            a(f'v_add_u32 {vr(t2)}, {sr(T[5])}, {vr(t1)}')
            a(f'v_mul_u32_u24 {vr(t3)}, 205, {vr(t2)}')
            a(f'v_lshrrev_b32 {vr(t3)}, 10, {vr(t3)}')
            a(f'v_mul_u32_u24 {vr(t4)}, 5, {vr(t3)}')
            a(f'v_sub_u32 {vr(t2)}, {vr(t2)}, {vr(t4)}')
            a(f'v_lshl_add_u32 {vr(t2)}, {vr(t2)}, 7, {vr(t0)}')
            a(f'v_mad_u32_u24 {vr(sad + nt)}, {vr(t3)}, {sr(T[4])}, {vr(t2)}')
        a(f's_lshl_b32 {sr(T[2])}, {sr(S_RB)}, 3')
        a(f's_lshl_b32 {sr(T[4])}, {sr(swm)}, 2')
        a(f's_add_u32 {sr(T[2])}, {sr(T[2])}, {sr(T[4])}')
        a(f's_mul_i32 {sr(T[2])}, {sr(T[2])}, 640')
        a(f's_add_u32 {sr(T[2])}, {sr(T[2])}, {WS_QK}')
        a('s_waitcnt lgkmcnt(0)')
        for mt in range(4):
            a(f'v_mul_f32 {vr(stt + 2 * mt)}, {sr(T[3])}, {vr(stt + 2 * mt)}')
            a(f'v_mul_f32 {vr(stt + 2 * mt + 1)}, {sr(T[3])}, {vr(stt + 2 * mt + 1)}')
        pk = V.alloc(8, 2)
        k = 0
        for nt in range(4):
            for mt in range(4):
                d = acc + (mt * 4 + nt) * 4
                for r in range(4):
                    a(f'v_mul_f32 {vr(d + r)}, {vr(d + r)}, {vr(stt + 2 * mt)}')
                for r in range(4):
                    a(f'v_fmac_f32 {vr(d + r)}, {vr(cs + 4 * nt + r)}, {vr(stt + 2 * mt + 1)}')
                p = pk + 2 * (k % 4); k += 1
                a(f'v_cvt_pk_bf16_f32 {vr(p)}, {vr(d)}, {vr(d + 1)}')
                a(f'v_cvt_pk_bf16_f32 {vr(p + 1)}, {vr(d + 2)}, {vr(d + 3)}')
                a(f'buffer_store_dwordx2 {vr(p, 2)}, {vr(sad + nt)}, {sr(S_WS, 4)}, {sr(T[2])} offen offset:{mt * 640} sc1')
    else:
        a(f'v_lshrrev_b32 {vr(t1)}, 4, v0')
        a(f's_lshl_b32 {sr(T[2])}, {sr(swm)}, 9')
        a(f's_add_u32 {sr(T[2])}, {sr(T[2])}, {S1_STATS}')
        a(f'v_lshl_add_u32 {vr(t0)}, {vr(t1)}, 5, {sr(T[2])}')
        for mt in range(4):
            a(f'ds_read_b128 {vr(stt + 8 * mt, 4)}, {vr(t0)} offset:{mt * 128}')
            a(f'ds_read_b128 {vr(stt + 8 * mt + 4, 4)}, {vr(t0)} offset:{mt * 128 + 16}')
        a(f's_sub_u32 {sr(T[2])}, {sr(S_CB)}, 10')
        a(f's_lshl_b32 {sr(T[2])}, {sr(T[2])}, 7')
        a(f's_lshl_b32 {sr(T[4])}, {sr(swn)}, 6')
        a(f's_add_u32 {sr(T[2])}, {sr(T[2])}, {sr(T[4])}')
        a(f'v_and_b32 {vr(t0)}, 15, v0')
        a(f'v_add_u32 {vr(t0)}, {sr(T[2])}, {vr(t0)}')
        a(f's_mov_b32 {sr(T[4])}, {HEADB}')
        tA = V.alloc(); tB = V.alloc()
        for nt in range(4):
            a(f's_lshl_b32 {sr(T[5])}, {sr(snt[nt])}, 4')
            a(f'v_add_u32 {vr(t2)}, {sr(T[5])}, {vr(t0)}')
            a(f'v_mul_u32_u24 {vr(t3)}, 3277, {vr(t2)}')
            a(f'v_lshrrev_b32 {vr(t3)}, 16, {vr(t3)}')
            a(f'v_mul_u32_u24 {vr(t4)}, 20, {vr(t3)}')
            a(f'v_sub_u32 {vr(t2)}, {vr(t2)}, {vr(t4)}')
            a(f'v_lshlrev_b32 {vr(tA)}, 8, {vr(t1)}')
            a(f'v_lshlrev_b32 {vr(tB)}, 6, {vr(t1)}')
            a(f'v_add_u32 {vr(tB)}, 768, {vr(tB)}')
            a(f'v_cmp_gt_u32 vcc, 16, {vr(t2)}')
            a(f'v_cndmask_b32 {vr(tA)}, {vr(tB)}, {vr(tA)}, vcc')
            a(f'v_lshl_add_u32 {vr(tA)}, {vr(t2)}, 4, {vr(tA)}')
            a(f'v_mad_u32_u24 {vr(sad + nt)}, {vr(t3)}, {sr(T[4])}, {vr(tA)}')
        a(f's_lshl_b32 {sr(T[2])}, {sr(S_RB)}, 2')
        a(f's_lshl_b32 {sr(T[4])}, {sr(swm)}, 1')
        a(f's_add_u32 {sr(T[2])}, {sr(T[2])}, {sr(T[4])}')
        a(f's_mul_i32 {sr(T[2])}, {sr(T[2])}, 1280')
        a(f's_add_u32 {sr(T[2])}, {sr(T[2])}, {WS_VF}')
        a('s_waitcnt lgkmcnt(0)')
        pk = V.alloc(8, 4)
        k = 0
        for nt in range(4):
            for i in range(2):
                p = pk + 4 * (k % 2); k += 1
                for hm in range(2):
                    mt = 2 * i + hm
                    d = acc + (mt * 4 + nt) * 4
                    for r in range(4):
                        a(f'v_mul_f32 {vr(d + r)}, {vr(d + r)}, {vr(stt + 8 * mt + 2 * r)}')
                    for r in range(4):
                        a(f'v_fmac_f32 {vr(d + r)}, {vr(cs + 4 * nt)}, {vr(stt + 8 * mt + 2 * r + 1)}')
                    a(f'v_cvt_pk_bf16_f32 {vr(p + 2 * hm)}, {vr(d)}, {vr(d + 1)}')
                    a(f'v_cvt_pk_bf16_f32 {vr(p + 2 * hm + 1)}, {vr(d + 2)}, {vr(d + 3)}')
                a(f'buffer_store_dwordx4 {vr(p, 4)}, {vr(sad + nt)}, {sr(S_WS, 4)}, {sr(T[2])} offen offset:{i * 1280} sc1')
    stamp(a, o, 1)
    a('s_waitcnt vmcnt(0)')
    a('s_barrier')
    stamp(a, o, 9)

def s1(a, o):
    o.cur = 1
    a(f's_cmp_ge_u32 {sr(S_WAVE)}, 4')
    a('s_cbranch_scc1 L_s1_l')
    a(f's_cmp_eq_u32 {sr(S_CB)}, 15')
    a('s_cbranch_scc1 L_s1_spare_c')
    row_stats(a, o)
    a(f's_cmp_ge_u32 {sr(S_CB)}, 10')
    a('s_cbranch_scc1 L_s1_v')
    s1_compute(a, o, False)
    a('s_branch L_s1_done')
    a.label('L_s1_v')
    s1_compute(a, o, True)
    a('s_branch L_s1_done')
    a.label('L_s1_l')
    a(f's_cmp_eq_u32 {sr(S_CB)}, 15')
    a('s_cbranch_scc1 L_s1_spare')
    s1_loader(a, o)
    a('s_branch L_s1_done')
    a.label('L_s1_spare_c')
    row_stats(a, o)
    a.label('L_s1_spare')
    s1_spare(a, o)
    a('s_branch L_s1_end')
    a.label('L_s1_done')
    lab = if_wave(a, 0)
    fl1_flag(a, o)
    a.label(lab)
    a.label('L_s1_end')
```

```python
from base import *

S_RB2, S_P = 43, 44
S2_DEC = 0
W3_BASE = 61440

def s2_roles(a):
    a(f's_lshr_b32 {sr(T[0])}, {sr(S_MEM)}, 4')
    a(f's_lshl_b32 {sr(S_RB2)}, {sr(S_TEAM)}, 1')
    a(f's_add_u32 {sr(S_RB2)}, {sr(S_RB2)}, {sr(T[0])}')
    a(f's_and_b32 {sr(S_P)}, {sr(S_MEM)}, 15')
    a(f's_lshr_b32 {sr(T[0])}, {sr(S_MEM)}, 3')
    a(f's_lshl_b32 {sr(T[0])}, {sr(T[0])}, 6')
    a(f's_lshl_b32 {sr(S_R0)}, {sr(S_TEAM)}, 8')
    a(f's_add_u32 {sr(S_R0)}, {sr(S_R0)}, {sr(T[0])}')
    a(f's_and_b32 {sr(S_CI)}, {sr(S_MEM)}, 7')

def nat_addr(a, base_v, pitch, coef):
    ch, cg, ce = coef(0, 0, 0)
    t0, t1, t2 = base_v + 5, base_v + 6, base_v + 7
    out = []
    for i in range(5):
        a(f'v_add_u32 {vr(t0)}, {64 * i}, v0')
        a(f'v_mul_u32_u24 {vr(t1)}, 6554, {vr(t0)}')
        a(f'v_lshrrev_b32 {vr(t1)}, 16, {vr(t1)}')
        a(f'v_mul_u32_u24 {vr(t2)}, 10, {vr(t1)}')
        a(f'v_sub_u32 {vr(t0)}, {vr(t0)}, {vr(t2)}')
        v = base_v + i
        a(f'v_and_b32 {vr(t2)}, 3, {vr(t1)}')
        a(f'v_mul_u32_u24 {vr(v)}, {ce}, {vr(t2)}')
        a(f'v_bfe_u32 {vr(t2)}, {vr(t1)}, 2, 2')
        a(f'v_mad_u32_u24 {vr(v)}, {vr(t2)}, {cg}, {vr(v)}')
        a(f'v_lshrrev_b32 {vr(t2)}, 4, {vr(t1)}')
        a(f'v_mad_u32_u24 {vr(v)}, {vr(t2)}, {ch}, {vr(v)}')
        a(f'v_mul_u32_u24 {vr(v)}, {pitch}, {vr(v)}')
        a(f'v_lshl_add_u32 {vr(v)}, {vr(t0)}, 4, {vr(v)}')
        out.append(v)
    return out

def read_decision(a, t3, t4):
    a('s_barrier')
    a(f'v_mov_b32 {vr(t4)}, 0')
    a(f'ds_read_b32 {vr(t3)}, {vr(t4)} offset:{S2_DEC}')
    a('s_waitcnt lgkmcnt(0)')
    a(f'v_readfirstlane_b32 {sr(S_FAST)}, {vr(t3)}')
    a('s_barrier')

W4R = 136

def s2_all(a, o):
    from s345 import load_w4, flagw_off
    o.cur = 2
    stamp(a, o, 1)
    V = RegAlloc(W4R, 1)
    t0, t1, t2, t3, t4 = [V.alloc() for _ in range(5)]
    vl = V.alloc()
    a(f'v_lshlrev_b32 {vr(vl)}, 4, v0')
    shh, sqb = 68, 69
    a(f's_lshr_b32 {sr(shh)}, {sr(S_WAVE)}, 2')
    a(f's_and_b32 {sr(sqb)}, {sr(S_WAVE)}, 3')
    def w4_loads():
        a(f'v_and_b32 {vr(t0)}, 15, v0')
        a(f'v_lshlrev_b32 {vr(t0)}, 2, {vr(t0)}')
        a(f'v_add_u32 {vr(t0)}, {WS_FL + FLR}, {vr(t0)}')
        poll(a, [t0], [t1])
        a(f's_xor_b32 {sr(T[1])}, {sr(shh)}, 1')
        a(f's_mul_i32 {sr(T[1])}, {sr(T[1])}, {10 * 3072}')
        load_w4(a, o, W4R, 0, 10, vl, T[0], None, extra=T[1])
    l0 = a.newlabel('L_s2_w0'); l1 = a.newlabel('L_s2_wj')
    a(f's_cmp_eq_u32 {sr(S_WAVE)}, 0')
    a(f's_cbranch_scc1 {l0}')
    if o.touchw2:
        def idx(d):
            a(f's_mul_i32 {sr(d)}, {sr(S_MEM)}, 7')
            a(f's_add_u32 {sr(d)}, {sr(d)}, {sr(S_WAVE)}')
            a(f's_sub_u32 {sr(d)}, {sr(d)}, 1')
        touch(a, S_W2, 70, 2, idx, t2, 134, T[2])
    w4_loads()
    a(f's_branch {l1}')
    a.label(l0)
    a(f'v_min_u32 {vr(t0)}, 13, v0')
    a(f'v_and_b32 {vr(t1)}, 1, {vr(t0)}')
    a(f'v_lshrrev_b32 {vr(t0)}, 1, {vr(t0)}')
    a(f's_mul_i32 {sr(T[0])}, {sr(S_P)}, 40')
    a(f's_lshr_b32 {sr(T[1])}, {sr(T[0])}, 7')
    a(f's_add_u32 {sr(T[0])}, {sr(T[0])}, 39')
    a(f's_lshr_b32 {sr(T[0])}, {sr(T[0])}, 7')
    a(f's_sub_u32 {sr(T[0])}, {sr(T[0])}, {sr(T[1])}')
    a(f'v_mul_u32_u24 {vr(t1)}, {sr(T[0])}, {vr(t1)}')
    a(f'v_add_u32 {vr(t1)}, {sr(T[1])}, {vr(t1)}')
    a(f'v_add_u32 {vr(t2)}, 2, {vr(t0)}')
    a(f'v_mul_u32_u24 {vr(t2)}, 86, {vr(t2)}')
    a(f'v_lshrrev_b32 {vr(t2)}, 8, {vr(t2)}')
    a(f'v_mul_u32_u24 {vr(t3)}, 5, {vr(t2)}')
    a(f'v_add_u32 {vr(t1)}, {vr(t1)}, {vr(t3)}')
    a(f'v_mul_u32_u24 {vr(t3)}, 3, {vr(t2)}')
    a(f'v_sub_u32 {vr(t3)}, {vr(t0)}, {vr(t3)}')
    a(f'v_add_u32 {vr(t3)}, 2, {vr(t3)}')
    a(f'v_cmp_eq_u32 vcc, 0, {vr(t2)}')
    a(f'v_cndmask_b32 {vr(t3)}, {vr(t3)}, 0, vcc')
    a(f'v_sub_u32 {vr(t3)}, {sr(S_RB2)}, {vr(t3)}')
    a(f'v_max_i32 {vr(t3)}, 0, {vr(t3)}')
    a(f'v_lshl_add_u32 {vr(t1)}, {vr(t3)}, 4, {vr(t1)}')
    a(f'v_lshlrev_b32 {vr(t1)}, 2, {vr(t1)}')
    a(f'v_add_u32 {vr(t1)}, {WS_FL + FL1}, {vr(t1)}')
    a(f's_lshl_b32 {sr(T[0])}, {sr(S_TEAM)}, 7')
    a(f's_add_u32 {sr(T[0])}, {sr(T[0])}, {WS_FL + FLX - 128}')
    a(f'v_lshl_add_u32 {vr(t3)}, v0, 2, {sr(T[0])}')
    a(f'v_cmp_le_u32 vcc, 32, v0')
    a(f'v_cndmask_b32 {vr(t1)}, {vr(t1)}, {vr(t3)}, vcc')
    poll(a, [t1], [t2], rng=True)
    a(f'v_cmp_ne_u32 vcc, {sr(S_XCC)}, {vr(t2)}')
    a('s_cmp_eq_u32 vcc_hi, 0')
    a(f's_cselect_b32 {sr(T[0])}, 1, 0')
    a(f'v_mov_b32 {vr(t3)}, {sr(T[0])}')
    a(f'v_mov_b32 {vr(t4)}, 0')
    a(f'ds_write_b32 {vr(t4)}, {vr(t3)} offset:{S2_DEC}')
    a('s_waitcnt lgkmcnt(0)')
    a.label(l1)
    read_decision(a, t3, t4)
    stamp(a, o, 2)
    a(f's_lshr_b32 {sr(T[2])}, {sr(S_WAVE)}, 1')
    a(f's_lshr_b32 {sr(T[3])}, {sr(T[2])}, 1')
    a(f's_lshl_b32 {sr(T[4])}, {sr(S_P)}, 1')
    a(f's_add_u32 {sr(T[4])}, {sr(T[4])}, {sr(T[3])}')
    a(f's_mul_i32 {sr(T[4])}, {sr(T[4])}, {HEADB}')
    a(f's_and_b32 {sr(T[3])}, {sr(T[2])}, 1')
    a(f's_cmp_eq_u32 {sr(T[3])}, 0')
    scsel(a, sr(T[5]), WS_QK + 32 * HEADB, WS_VF)
    a(f's_add_u32 {sr(T[4])}, {sr(T[4])}, {sr(T[5])}')
    a(f's_mul_i32 {sr(T[5])}, {sr(S_RB2)}, 5120')
    a(f's_add_u32 {sr(T[4])}, {sr(T[4])}, {sr(T[5])}')
    a(f's_sub_u32 {sr(T[4])}, {sr(T[4])}, 10240')
    a(f's_mul_i32 {sr(T[5])}, {sr(T[2])}, 15360')
    a(f's_and_b32 {sr(T[6])}, {sr(S_WAVE)}, 1')
    a(f's_lshl_b32 {sr(T[6])}, {sr(T[6])}, 10')
    a(f's_add_u32 {sr(T[4])}, {sr(T[4])}, {sr(T[6])}')
    a(f's_add_u32 {sr(T[5])}, {sr(T[5])}, {sr(T[6])}')
    a(f's_mov_b32 {sr(T[7])}, 0')
    a(f's_cmp_eq_u32 {sr(S_RB2)}, 1')
    a(f's_cselect_b32 {sr(T[7])}, 5, {sr(T[7])}')
    a(f's_cmp_eq_u32 {sr(S_RB2)}, 0')
    a(f's_cselect_b32 {sr(T[7])}, 10, {sr(T[7])}')
    a(f's_and_b32 s70, {sr(S_WAVE)}, 1')
    for n in range(7, -1, -1):
        a(f's_add_u32 s71, s70, {2 * n}')
        lab = None
        if n == 7:
            lab = a.newlabel('L_s2_skipdma')
            a('s_cmp_ge_u32 s71, 15')
            a(f's_cbranch_scc1 {lab}')
        a(f's_cmp_ge_u32 s71, {sr(T[7])}')
        a(f's_add_u32 s71, {sr(T[4])}, {n * 2048}') if False else None
        a(f's_cselect_b32 s71, {sr(T[4])}, {OOB:#x}')
        a(f's_add_u32 s71, s71, {n * 2048}')
        a(f's_add_u32 m0, {sr(T[5])}, {n * 2048}')
        a('s_nop 0')
        a(f'buffer_load_dwordx4 {vr(vl)}, {sr(S_WS, 4)}, s71 offen sc1 lds')
        if lab: a.label(lab)
    qf = V.alloc(8, 4)
    vq1, vq2 = t0, t4
    a(f'v_lshrrev_b32 {vr(t1)}, 4, v0')
    a(f'v_and_b32 {vr(t2)}, 15, v0')
    a(f'v_lshlrev_b32 {vr(t3)}, 8, {vr(t1)}')
    a(f'v_lshl_add_u32 {vr(t3)}, {vr(t2)}, 3, {vr(t3)}')
    sc = V.alloc(72, 4)
    a(f'v_mov_b32 {vr(sc)}, {OOB:#x}')
    a(f'v_cmp_gt_u32 vcc, 3, {vr(t1)}')
    a(f'v_cndmask_b32 {vr(vq1)}, {vr(sc)}, {vr(t3)}, vcc')
    a(f'v_add_u32 {vr(t3)}, 128, {vr(t3)}')
    a(f'v_cmp_gt_u32 vcc, 2, {vr(t1)}')
    a(f'v_cndmask_b32 {vr(vq2)}, {vr(sc)}, {vr(t3)}, vcc')
    a(f's_lshl_b32 {sr(T[2])}, {sr(S_P)}, 1')
    a(f's_add_u32 {sr(T[2])}, {sr(T[2])}, {sr(shh)}')
    a(f's_mul_i32 {sr(T[2])}, {sr(T[2])}, {HEADB}')
    a(f's_lshl_b32 {sr(T[3])}, {sr(S_RB2)}, 3')
    a(f's_lshl_b32 {sr(T[4])}, {sr(sqb)}, 1')
    a(f's_add_u32 {sr(T[3])}, {sr(T[3])}, {sr(T[4])}')
    a(f's_mul_i32 s73, {sr(T[3])}, 20480')
    a(f's_mul_i32 {sr(T[3])}, {sr(T[3])}, 640')
    a(f's_add_u32 {sr(T[2])}, {sr(T[2])}, {sr(T[3])}')
    a(f's_add_u32 {sr(T[2])}, {sr(T[2])}, {WS_QK}')
    for qt in range(2):
        f = qf + qt * 4
        a(f'buffer_load_dwordx2 {vr(f, 2)}, {vr(vq1)}, {sr(S_WS, 4)}, {sr(T[2])} offen offset:{qt * 640} sc1')
        a(f'buffer_load_dwordx2 {vr(f + 2, 2)}, {vr(vq2)}, {sr(S_WS, 4)}, {sr(T[2])} offen offset:{qt * 640} sc1')
    for r in range(4):
        a(f'v_lshl_add_u32 {vr(t3)}, {vr(t1)}, 2, {r}')
        a(f'v_cmp_le_u32 {sr(S_MSK + 2 * r, 2)}, {vr(t3)}, {vr(t2)}')
    kad = V.alloc(); vad0 = V.alloc(); vad1 = V.alloc()
    a(f's_mul_i32 {sr(T[2])}, {sr(shh)}, 30720')
    a(f's_mul_i32 {sr(T[3])}, {sr(sqb)}, 1280')
    a(f's_add_u32 {sr(T[2])}, {sr(T[2])}, {sr(T[3])}')
    a(f'v_lshlrev_b32 {vr(t3)}, 8, {vr(t1)}')
    a(f'v_lshl_add_u32 {vr(t3)}, {vr(t2)}, 3, {vr(t3)}')
    a(f'v_add_u32 {vr(kad)}, {sr(T[2])}, {vr(t3)}')
    a(f's_add_u32 {sr(T[2])}, {sr(T[2])}, 15360')
    a(f'v_lshl_add_u32 {vr(vad0)}, v0, 4, {sr(T[2])}')
    a(f'v_lshlrev_b32 {vr(t3)}, 6, {vr(t1)}')
    a(f'v_and_b32 {vr(sc)}, 3, {vr(t2)}')
    a(f'v_lshl_add_u32 {vr(t3)}, {vr(sc)}, 4, {vr(t3)}')
    a(f's_add_u32 {sr(T[2])}, {sr(T[2])}, 1024')
    a(f'v_add_u32 {vr(vad1)}, {sr(T[2])}, {vr(t3)}')
    def S(kt): return sc + kt * 4
    vf = [V.alloc(8, 4) for _ in range(2)]
    oacc = V.alloc(8, 4)
    cin = oacc
    kf = [V.alloc(4, 4) for _ in range(3)]
    mx = V.alloc(2, 2)
    neg = V.alloc()
    a(f'v_mov_b32 {vr(neg)}, {NEG:#x}')
    for f in vf:
        for r in range(4): a(f'v_mov_b32 {vr(f + 4 + r)}, {sr(S_ONES)}')
    l0 = a.newlabel('L_s2_w0b'); l1 = a.newlabel('L_s2_wjb')
    a(f's_cmp_eq_u32 {sr(S_WAVE)}, 0')
    a(f's_cbranch_scc1 {l0}')
    a('s_waitcnt vmcnt(0)')
    a(f's_branch {l1}')
    a.label(l0)
    a('s_waitcnt vmcnt(0)')
    a.label(l1)
    a('s_barrier')
    stamp(a, o, 3)
    lab = if_wave(a, 0)
    w4_loads()
    a.label(lab)
    va = [V.alloc() for _ in range(5)]
    vtmp = nat_addr(a, sc, 1280, lambda *x: (20, 40, 1))
    for i in range(5): a(f'v_mov_b32 {vr(va[i])}, {vr(vtmp[i])}')
    a(f's_mul_i32 s74, {sr(S_CI)}, 160')
    w3n = [0]
    def w3dma():
        m = w3n[0]
        if m >= 13: return
        w3n[0] += 1
        p0, p1 = 2 * m, 2 * m + 1
        def emit(pc):
            sq, i = pc // 5, pc % 5
            a(f's_mul_i32 s75, {sr(sqb)}, {160 * 1280}')
            a(f's_add_u32 s75, s75, s74')
            a(f's_add_u32 s75, s75, {4 * sq * 1280}')
            a(f's_mul_i32 s71, {sr(sqb)}, 5120')
            a(f's_add_u32 m0, s71, {W3_BASE + sq * 20480 + i * 1024}')
            a('s_nop 0')
            a(f'buffer_load_dwordx4 {vr(va[i] if isinstance(va, list) else va + i)}, {sr(S_WO, 4)}, s75 offen lds')
        la = a.newlabel('L_w3a'); lb = a.newlabel('L_w3b')
        a(f's_cmp_eq_u32 {sr(shh)}, 0')
        a(f's_cbranch_scc0 {la}')
        emit(p0)
        a(f's_branch {lb}')
        a.label(la)
        if p1 < 25: emit(p1)
        a.label(lb)
    a('s_mov_b32 s70, 0x000f000f')
    a('s_mov_b32 s71, 0x000f000f')
    a('s_mov_b64 s[76:77], s[70:71]')
    a(f's_lshl_b32 {sr(T[2])}, {sr(S_RB2)}, 2')
    a(f's_add_u32 {sr(T[2])}, {sr(T[2])}, {sr(sqb)}')
    a(f's_lshl_b32 {sr(T[4])}, {sr(S_P)}, 8')
    a(f's_add_u32 s73, s73, {sr(T[4])}')
    a(f's_lshl_b32 {sr(T[4])}, {sr(shh)}, 3')
    a(f's_add_u32 s73, s73, {sr(T[4])}')
    a(f's_add_u32 s73, s73, {WS_OF}')
    P = lambda r: vr(r, 2)
    for qt in range(2):
        kts = list(range(0, 17)) if qt == 0 else list(range(1, 18))
        def kread(kt):
            f = kf[kt % 3]
            return [f'ds_read_b64 {vr(f, 2)}, {vr(kad)} offset:{kt * 640}', f'ds_read_b64 {vr(f + 2, 2)}, {vr(kad)} offset:{kt * 640 + 128}']
        for kt in kts[:2]:
            for x in kread(kt): a(x)
        lastjj = -1
        for n, kt in enumerate(kts):
            if n + 2 < len(kts):
                for x in kread(kts[n + 2]): a(x)
            jj = kt // 2
            if jj != lastjj:
                lastjj = jj
                a(f's_cmp_ge_u32 {sr(T[2])}, {8 - jj}')
                a(f's_cselect_b32 {sr(T[3])}, 0, {NEG:#x}')
                for r in range(4): a(f'v_mov_b32 {vr(cin + r)}, {sr(T[3])}')
            rem = min(len(kts) - 1, n + 2) - n
            a(f's_waitcnt lgkmcnt({2 * rem})')
            a(f'v_mfma_f32_16x16x32_bf16 {vr(S(kt), 4)}, {vr(kf[kt % 3], 4)}, {vr(qf + qt * 4, 4)}, {vr(cin, 4)}')
            if n % 5 == 4: w3dma()
        if qt == 0: stamp(a, o, 4)
        def vread(jj):
            f = vf[jj % 2]
            return [f'ds_read_b128 {vr(f, 4)}, {vr(vad0)} offset:{jj * 1280}',
                    's_mov_b64 exec, s[76:77]',
                    f'ds_read_b128 {vr(f + 4, 4)}, {vr(vad1)} offset:{jj * 1280}',
                    's_mov_b64 exec, -1']
        for x in vread(0): a(x)
        kf_, kl_ = kts[0], kts[-1]
        for r in range(4):
            a(f'v_cndmask_b32 {vr(S(kf_) + r)}, {vr(S(kf_) + r)}, {vr(neg)}, {sr(S_MSK + 2 * r, 2)}')
            a(f'v_cndmask_b32 {vr(S(kl_) + r)}, {vr(neg)}, {vr(S(kl_) + r)}, {sr(S_MSK + 2 * r, 2)}')
        regs = [S(kt) + r for kt in kts for r in range(4)]
        m = mx; m2 = t0
        a(f'v_max3_f32 {vr(m)}, {vr(regs[0])}, {vr(regs[1])}, {vr(regs[2])}')
        a(f'v_max3_f32 {vr(m2)}, {vr(regs[3])}, {vr(regs[4])}, {vr(regs[5])}')
        rest = regs[6:]
        k = 0
        while len(rest) >= 2:
            tgt = m if k % 2 == 0 else m2
            a(f'v_max3_f32 {vr(tgt)}, {vr(tgt)}, {vr(rest[0])}, {vr(rest[1])}')
            rest = rest[2:]; k += 1
        if rest: a(f'v_max_f32 {vr(m)}, {vr(m)}, {vr(rest[0])}')
        a(f'v_max_f32 {vr(m)}, {vr(m)}, {vr(m2)}')
        xg_reduce(a, m, t0, 'v_max_f32')
        if qt == 0: stamp(a, o, 5)
        for jj in range(9):
            for h in range(2):
                kt = 2 * jj + h
                b = S(kt)
                if kt in kts:
                    for x in (0, 2):
                        a(f'v_pk_add_f32 {P(b + x)}, {P(b + x)}, {P(mx)} op_sel_hi:[1,0] neg_lo:[0,1] neg_hi:[0,1]')
                    for r in range(4): a(f'v_exp_f32 {vr(b + r)}, {vr(b + r)}')
            b0, b1 = S(2 * jj), S(2 * jj + 1)
            if 2 * jj in kts:
                a(f'v_cvt_pk_bf16_f32 {vr(b0)}, {vr(b0)}, {vr(b0 + 1)}')
                a(f'v_cvt_pk_bf16_f32 {vr(b0 + 1)}, {vr(b0 + 2)}, {vr(b0 + 3)}')
            else:
                a(f'v_mov_b32 {vr(b0)}, 0'); a(f'v_mov_b32 {vr(b0 + 1)}, 0')
            if 2 * jj + 1 in kts:
                a(f'v_cvt_pk_bf16_f32 {vr(b0 + 2)}, {vr(b1)}, {vr(b1 + 1)}')
                a(f'v_cvt_pk_bf16_f32 {vr(b0 + 3)}, {vr(b1 + 2)}, {vr(b1 + 3)}')
            else:
                a(f'v_mov_b32 {vr(b0 + 2)}, 0'); a(f'v_mov_b32 {vr(b0 + 3)}, 0')
            if jj % 3 == 1: w3dma()
            if jj + 1 < 9:
                for x in vread(jj + 1): a(x)
                a('s_waitcnt lgkmcnt(2)')
            else:
                a('s_waitcnt lgkmcnt(0)')
            f = vf[jj % 2]
            for tl in range(2):
                d = vr(oacc + tl * 4, 4)
                a(f'v_mfma_f32_16x16x32_bf16 {d}, {vr(f + 4 * tl, 4)}, {vr(S(2 * jj), 4)}, {"0" if jj == 0 else d}')
        o0, o1 = oacc, oacc + 4
        a(f'v_mov_b32 {vr(t0)}, {vr(o1)}')
        a(f'v_mov_b32 {vr(t3)}, {vr(o1)}')
        a(f'v_permlane16_swap_b32 {vr(t0)}, {vr(t3)}')
        a(f'v_rcp_f32 {vr(t4)}, {vr(t3)}')
        for r in range(4):
            a(f'v_mul_f32 {vr(o0 + r)}, {vr(o0 + r)}, {vr(t4)}')
            a(f'v_mul_f32 {vr(o1 + r)}, {vr(o1 + r)}, {vr(t4)}')
        pk = S(16)
        a(f'v_cvt_pk_bf16_f32 {vr(pk)}, {vr(o0)}, {vr(o0 + 1)}')
        a(f'v_cvt_pk_bf16_f32 {vr(pk + 1)}, {vr(o0 + 2)}, {vr(o0 + 3)}')
        a(f'v_cvt_pk_bf16_f32 {vr(pk + 2)}, {vr(o1)}, {vr(o1 + 1)}')
        a(f'v_cvt_pk_bf16_f32 {vr(pk + 3)}, {vr(o1 + 2)}, {vr(o1 + 3)}')
        if qt: a(f's_add_u32 s73, s73, 20480')
        oa0, oa1 = t0, t3
        a(f'v_lshrrev_b32 {vr(t1)}, 4, v0')
        a(f'v_and_b32 {vr(t2)}, 15, v0')
        a(f'v_lshlrev_b32 {vr(oa0)}, 12, {vr(t1)}')
        a(f'v_lshl_add_u32 {vr(oa0)}, {vr(t2)}, 4, {vr(oa0)}')
        a(f'v_lshlrev_b32 {vr(oa1)}, 4, {vr(t2)}')
        a(f'v_add_u32 {vr(oa1)}, 16384, {vr(oa1)}')
        a(f'v_mov_b32 {vr(t4)}, {OOB:#x}')
        a(f'v_cmp_eq_u32 vcc, 0, {vr(t1)}')
        a(f'v_cndmask_b32 {vr(oa1)}, {vr(t4)}, {vr(oa1)}, vcc')
        def st_of(sc_):
            a(f'buffer_store_dwordx2 {vr(pk, 2)}, {vr(oa0)}, {sr(S_WS, 4)}, s73 offen{sc_}')
            a(f'buffer_store_dwordx2 {vr(pk + 2, 2)}, {vr(oa1)}, {sr(S_WS, 4)}, s73 offen{sc_}')
        dual(a, o, st_of)
        if qt == 0: stamp(a, o, 6)
    while w3n[0] < 13: w3dma()
    stamp(a, o, 7)
    a('s_waitcnt vmcnt(0)')
    stamp(a, o, 8)
    flagw_off(a, T[0], FL2, nw=8)
    set_flag(a, o, T[0], mode='dual', v1=t0, v2=t1)
```

```python
from base import *
from s2 import W3_BASE, W4R

VH = 116
S5_CH = 20480
S4_A = 81920
XCH3 = 61440
KL = 10
W5SEQ = [0, 6, 1, 7, 2, 8, 3, 9, 4, 10, 5, 11]
NSLOT = 7
HS = 155648

def lds_inc(a, word, va, vb):
    a(f'v_mov_b32 {vr(va)}, {word}')
    a(f'v_mov_b32 {vr(vb)}, 1')
    a('s_mov_b64 exec, 1')
    a(f'ds_add_u32 {vr(va)}, {vr(vb)}')
    a('s_mov_b64 exec, -1')

def lds_wait(a, word, va, vb, sreg_word=None):
    top = a.newlabel('L_lw'); done = a.newlabel('L_lwd')
    if sreg_word is None: a(f'v_mov_b32 {vr(va)}, {word}')
    else: a(f'v_mov_b32 {vr(va)}, {sr(sreg_word)}')
    a(f's_mov_b32 {sr(S_SPIN)}, 0')
    a.label(top)
    a(f'ds_read_b32 {vr(vb)}, {vr(va)}')
    a('s_waitcnt lgkmcnt(0)')
    a(f'v_readfirstlane_b32 s79, {vr(vb)}')
    a('s_cmp_ge_u32 s79, 4')
    a(f's_cbranch_scc1 {done}')
    a(f's_add_u32 {sr(S_SPIN)}, {sr(S_SPIN)}, 1')
    a(f's_cmp_lt_u32 {sr(S_SPIN)}, {1 << 22}')
    a(f's_cbranch_scc1 {top}')
    a.label(done)

def flagw_off(a, dst, base, nw=4):
    a(f's_lshl_b32 {sr(dst)}, {sr(S_TEAM)}, 5')
    a(f's_add_u32 {sr(dst)}, {sr(dst)}, {sr(S_MEM)}')
    a(f's_lshl_b32 {sr(dst)}, {sr(dst)}, {2 if nw == 4 else 3}')
    a(f's_add_u32 {sr(dst)}, {sr(dst)}, {sr(S_LW if nw == 4 else S_WAVE)}')
    a(f's_lshl_b32 {sr(dst)}, {sr(dst)}, 2')
    a(f's_add_u32 {sr(dst)}, {sr(dst)}, {WS_FL + base}')

def poll_w(a, base, first_mem_sreg, nmem_mask, wave_sreg, v1, v2, nw=4):
    lg = 4 if nw == 4 else 5
    a(f'v_and_b32 v{v1}, {nmem_mask}, v0')
    a(f's_lshl_b32 {sr(T[6])}, {sr(S_TEAM)}, 5')
    a(f's_add_u32 {sr(T[6])}, {sr(T[6])}, {sr(first_mem_sreg)}')
    a(f's_lshl_b32 {sr(T[6])}, {sr(T[6])}, {lg}')
    if wave_sreg is not None:
        a(f's_lshl_b32 {sr(T[7])}, {sr(wave_sreg)}, 2')
        a(f's_add_u32 {sr(T[6])}, {sr(T[6])}, {sr(T[7])}')
    a(f's_add_u32 {sr(T[6])}, {sr(T[6])}, {WS_FL + base}')
    a(f'v_lshl_add_u32 v{v1}, v{v1}, {lg}, {sr(T[6])}')
    if wave_sreg is None:
        sh = {7: 3, 15: 4}[nmem_mask]
        a(f'v_bfe_u32 v{v2}, v0, {sh}, {2 if nw == 4 else 3}')
        a(f'v_lshl_add_u32 v{v1}, v{v2}, 2, v{v1}')
    poll(a, [v1], [v2])

def tr_base(a, dst, t0, t1):
    a(f'v_lshrrev_b32 {vr(t0)}, 4, v0')
    a(f'v_bfe_u32 {vr(t1)}, v0, 2, 2')
    a(f'v_lshl_add_u32 {vr(t0)}, {vr(t0)}, 2, {vr(t1)}')
    a(f'v_mul_u32_u24 {vr(t0)}, 160, {vr(t0)}')
    a(f'v_and_b32 {vr(t1)}, 3, v0')
    a(f'v_lshl_add_u32 {vr(dst)}, {vr(t1)}, 3, {vr(t0)}')

def load_w4(a, o, base_reg, ks0, nks, vl, sbase, tmp, extra=None):
    a(f's_lshl_b32 {sr(sbase)}, {sr(S_CI)}, 2')
    a(f's_add_u32 {sr(sbase)}, {sr(sbase)}, {sr(S_LW)}')
    a(f's_mul_i32 {sr(sbase)}, {sr(sbase)}, {20 * 3 * 1024}')
    a(f's_add_u32 {sr(sbase)}, {sr(sbase)}, {WS_WT4 + ks0 * 3072}')
    if extra is not None: a(f's_add_u32 {sr(sbase)}, {sr(sbase)}, {sr(extra)}')
    for u in range(nks * 3):
        if u % 4 == 0 and u: a(f's_add_u32 {sr(sbase)}, {sr(sbase)}, 4096')
        a(f'buffer_load_dwordx4 {vr(base_reg + 4 * u, 4)}, {vr(vl)}, {sr(S_WS, 4)}, {sr(sbase)} offen offset:{(u % 4) * 1024} sc1')

def cs_early(a, wreg, nks, cs, ones):
    for i in range(4): a(f'v_mov_b32 {vr(ones + i)}, {sr(S_ONES)}')
    for i in range(nks):
        for jn in range(3):
            d = vr(cs + 4 * jn, 4)
            a(f'v_mfma_f32_16x16x32_bf16 {d}, {vr(wreg + (i * 3 + jn) * 4, 4)}, {vr(ones, 4)}, {"0" if i == 0 else d}')

def s4(a, o, V, loader, wreg, cs, post_p1=None):
    o.cur = 4 if not loader else 7
    ks_list = list(range(0, KL)) if loader else list(range(KL, 20))
    acc = V.alloc(48, 4)
    fA = V.alloc(16, 4)
    aad = [V.alloc() for _ in range(2)]
    t0, t1, t2, t3, t4 = [V.alloc() for _ in range(5)]
    stt = wreg
    b1r = V.alloc(6, 2)
    rn = V.alloc(8, 2)
    mts = (2, 3) if loader else (0, 1)
    rst = {mt: rn + 4 * i for i, mt in enumerate(mts)}; nmr = {mt: rn + 4 * i + 2 for i, mt in enumerate(mts)}
    a(f's_and_b32 {sr(T[5])}, {sr(S_MEM)}, 24')
    poll_w(a, FL3, T[5], 7, S_LW, t0, t1)
    stamp(a, o, 1)
    half = 0 if loader else 1
    a(f'v_lshlrev_b32 {vr(t0)}, 4, v0')
    a(f's_lshr_b32 {sr(T[0])}, {sr(S_R0)}, 4')
    a(f's_add_u32 {sr(T[0])}, {sr(T[0])}, {sr(S_LW)}')
    a(f's_mul_i32 {sr(T[0])}, {sr(T[0])}, 20480')
    a(f's_add_u32 {sr(T[0])}, {sr(T[0])}, {WS_HF + half * 10240}')
    a(f's_mul_i32 {sr(T[1])}, {sr(S_LW)}, 20480')
    for k in range(10):
        a(f's_add_u32 m0, {sr(T[1])}, {S4_A + half * 10240 + k * 1024}')
        a(f's_add_u32 {sr(T[2])}, {sr(T[0])}, {k * 1024}')
        a(f'buffer_load_dwordx4 {vr(t0)}, {sr(S_WS, 4)}, {sr(T[2])} offen sc1 lds')
    a(f'v_lshrrev_b32 {vr(t1)}, 4, v0')
    a(f'v_lshlrev_b32 {vr(t2)}, 3, {vr(t1)}')
    a(f's_mul_i32 {sr(T[2])}, {sr(S_CI)}, 384')
    a(f's_mul_i32 {sr(T[3])}, {sr(S_LW)}, 96')
    a(f's_add_u32 {sr(T[2])}, {sr(T[2])}, {sr(T[3])}')
    for jn in range(3):
        a(f'buffer_load_dwordx2 {vr(b1r + 2 * jn, 2)}, {vr(t2)}, {sr(S_B1, 4)}, {sr(T[2])} offen offset:{jn * 32}')
    a(f'v_add_u32 {vr(aad[0])}, 0x10000, {vr(t0)}')
    a(f'v_add_u32 {vr(aad[1])}, 0x20000, {vr(t0)}')
    vst = V.alloc()
    a(f'v_and_b32 {vr(vst)}, 15, v0')
    a(f'v_lshlrev_b32 {vr(vst)}, 6, {vr(vst)}')
    a(f's_lshl_b32 s73, {sr(S_R0)}, 6')
    a(f's_add_u32 s73, s73, {WS_ST2}')
    a('s_waitcnt vmcnt(0)')
    a('s_barrier')
    stamp(a, o, 2)
    if post_p1: post_p1()
    def aread(ks, mt):
        off = S4_A + mt * 20480 + ks * 1024 - 65536
        return f'ds_read_b128 {vr(fA + 4 * mt, 4)}, {vr(aad[off // 65536])} offset:{off % 65536}'
    def stat_loads(mt):
        return [f'buffer_load_dwordx4 {vr(stt + 4 * k, 4)}, {vr(vst)}, {sr(S_WS, 4)}, s73 offen offset:{mt * 1024 + k * 16} sc1' for k in range(4)]
    def stat_calc(mt):
        b = stt; F = []
        F.append(f'v_add_f32 {vr(t0)}, {vr(b)}, {vr(b + 2)}')
        for i in range(2, 8): F.append(f'v_add_f32 {vr(t0)}, {vr(t0)}, {vr(b + 2 * i)}')
        F.append(f'v_mul_f32 {vr(t0)}, 0.125, {vr(t0)}')
        F.append(f'v_add_f32 {vr(t1)}, {vr(b + 1)}, {vr(b + 3)}')
        for i in range(2, 8): F.append(f'v_add_f32 {vr(t1)}, {vr(t1)}, {vr(b + 2 * i + 1)}')
        for i in range(8):
            F.append(f'v_sub_f32 {vr(t2)}, {vr(b + 2 * i)}, {vr(t0)}')
            if i == 0: F.append(f'v_mul_f32 {vr(t3)}, {vr(t2)}, {vr(t2)}')
            else: F.append(f'v_fmac_f32 {vr(t3)}, {vr(t2)}, {vr(t2)}')
        F.append(f'v_mov_b32 {vr(t4)}, 0x42a00000')
        F.append(f'v_fmac_f32 {vr(t1)}, {vr(t3)}, {vr(t4)}')
        F.append(f'v_mov_b32 {vr(t4)}, {f2u(1e-5):#x}')
        F.append(f'v_fmac_f32 {vr(t4)}, {f2u(1.0 / 640.0):#x}, {vr(t1)}')
        F.append(f'v_rsq_f32 {vr(rst[mt])}, {vr(t4)}')
        F.append(f'v_mul_f32 {vr(nmr[mt])}, {vr(t0)}, {vr(rst[mt])}')
        F.append(f'v_sub_f32 {vr(nmr[mt])}, 0, {vr(nmr[mt])}')
        return F
    for mt in range(4): a(aread(ks_list[0], mt))
    n = len(ks_list)
    fillq = []
    for i, ks in enumerate(ks_list):
        if i == 2:
            for x in stat_loads(mts[0]): a(x)
        if i == 4:
            a('s_waitcnt vmcnt(0)'); fillq = stat_calc(mts[0])
        if i == 6:
            for f in fillq: a(f)
            fillq = []
            for x in stat_loads(mts[1]): a(x)
        if i == n - 1 and n > 9:
            a('s_waitcnt vmcnt(0)'); fillq = stat_calc(mts[1])
        last = (i == n - 1)
        for mt in range(4):
            a(f's_waitcnt lgkmcnt({3 if not last else 3 - mt})')
            for jn in range(3):
                W = vr(wreg + (i * 3 + jn) * 4, 4)
                d = vr(acc + (mt * 3 + jn) * 4, 4)
                a(f'v_mfma_f32_16x16x32_bf16 {d}, {W}, {vr(fA + 4 * mt, 4)}, {"0" if i == 0 else d}')
                for f in fillq[:2]: a(f)
                fillq = fillq[2:]
            if not last: a(aread(ks_list[i + 1], mt))
    if n > 9:
        for f in fillq: a(f)
    else:
        a('s_waitcnt vmcnt(0)')
        for f in stat_calc(mts[1]): a(f)
    a('s_barrier')
    stamp(a, o, 3)
    if loader:
        lab = if_wave(a, 4)
        a(f'v_lshlrev_b32 {vr(t0)}, 2, v0')
        a(f'v_add_u32 {vr(t0)}, {HS}, {vr(t0)}')
        a(f'v_mov_b32 {vr(t1)}, 0')
        a(f'ds_write_b32 {vr(t0)}, {vr(t1)}')
        a.label(lab)
    give = (0, 1) if loader else (2, 3)
    xw = V.alloc(); xr = V.alloc()
    a(f'v_lshlrev_b32 {vr(t0)}, 4, v0')
    a(f's_mul_i32 {sr(T[0])}, {sr(S_LW)}, 18432')
    a(f's_add_u32 {sr(T[0])}, {sr(T[0])}, {S4_A}')
    a(f'v_add_u32 {vr(xw)}, {sr(T[0])}, {vr(t0)}')
    a(f'v_add_u32 {vr(xr)}, {9216 if not loader else 0}, {vr(xw)}')
    if loader: a(f'v_add_u32 {vr(xw)}, 9216, {vr(xw)}')
    k = 0
    for mt in give:
        for jn in range(3):
            a(f'ds_write_b128 {vr(xw)}, {vr(acc + (mt * 3 + jn) * 4, 4)} offset:{k * 1024}'); k += 1
    for jn in range(3):
        a(f'ds_write_b128 {vr(xw)}, {vr(cs + 4 * jn, 4)} offset:{k * 1024}'); k += 1
    a('s_waitcnt lgkmcnt(0)')
    a('s_barrier')
    k = 0
    tmpb = [acc + (mt * 3 + jn) * 4 for mt in give for jn in range(3)]
    for r in tmpb:
        a(f'ds_read_b128 {vr(r, 4)}, {vr(xr)} offset:{k * 1024}'); k += 1
    c2 = fA
    for jn in range(3):
        a(f'ds_read_b128 {vr(c2 + 4 * jn, 4)}, {vr(xr)} offset:{k * 1024}'); k += 1
    bf = wreg + 16
    for jn in range(3):
        for hf in range(2):
            a(f'v_lshlrev_b32 {vr(bf + 4 * jn + 2 * hf)}, 16, {vr(b1r + 2 * jn + hf)}')
            a(f'v_and_b32 {vr(bf + 4 * jn + 2 * hf + 1)}, 0xffff0000, {vr(b1r + 2 * jn + hf)}')
    a('s_waitcnt lgkmcnt(0)')
    a('s_barrier')
    stamp(a, o, 4)
    P = lambda r: vr(r, 2)
    for jn in range(3):
        for h in (0, 2): a(f'v_pk_add_f32 {P(cs + 4 * jn + h)}, {P(cs + 4 * jn + h)}, {P(c2 + 4 * jn + h)}')
    k = 0
    for mt in mts:
        for jn in range(3):
            d = acc + (mt * 3 + jn) * 4
            for h in (0, 2): a(f'v_pk_add_f32 {P(d + h)}, {P(d + h)}, {P(tmpb[k] + h)}')
            k += 1
    c0 = -GELU_C; c1 = -GELU_C * 0.044715
    a(f's_mov_b32 s70, {f2u(c1):#x}')
    a(f's_mov_b32 s71, {f2u(c1):#x}')
    vc0 = V.alloc(2, 2)
    a(f'v_mov_b32 {vr(vc0)}, {f2u(c0):#x}')
    a(f'v_mov_b32 {vr(vc0 + 1)}, {f2u(c0):#x}')
    tt = stt
    pk = tmpb
    k = 0
    for jn in range(3):
        for mt in mts:
            d = acc + (mt * 3 + jn) * 4
            tq = tt + 4 * (k % 2)
            for h in (0, 2): a(f'v_pk_fma_f32 {P(tq + h)}, {P(cs + 4 * jn + h)}, {P(nmr[mt])}, {P(bf + 4 * jn + h)} op_sel_hi:[1,0,1]')
            for h in (0, 2): a(f'v_pk_fma_f32 {P(d + h)}, {P(d + h)}, {P(rst[mt])}, {P(tq + h)} op_sel_hi:[1,0,1]')
            for h in (0, 2): a(f'v_pk_mul_f32 {P(tq + h)}, {P(d + h)}, {P(d + h)}')
            for h in (0, 2): a(f'v_pk_fma_f32 {P(tq + h)}, {P(tq + h)}, s[70:71], {P(vc0)}')
            for h in (0, 2): a(f'v_pk_mul_f32 {P(tq + h)}, {P(tq + h)}, {P(d + h)}')
            for r in range(4): a(f'v_exp_f32 {vr(tq + r)}, {vr(tq + r)}')
            for h in (0, 2): a(f'v_pk_add_f32 {P(tq + h)}, {P(tq + h)}, 1.0 op_sel_hi:[1,0]')
            for r in range(4): a(f'v_rcp_f32 {vr(tq + r)}, {vr(tq + r)}')
            for h in (0, 2): a(f'v_pk_mul_f32 {P(d + h)}, {P(d + h)}, {P(tq + h)}')
            p = pk[k]; k += 1
            a(f'v_cvt_pk_bf16_f32 {vr(p)}, {vr(d)}, {vr(d + 1)}')
            a(f'v_cvt_pk_bf16_f32 {vr(p + 1)}, {vr(d + 2)}, {vr(d + 3)}')
    a(f'v_and_b32 {vr(t0)}, 15, v0')
    a(f'v_lshrrev_b32 {vr(t1)}, 4, v0')
    gad = t2
    a(f'v_lshlrev_b32 {vr(gad)}, 8, {vr(t1)}')
    a(f'v_lshl_add_u32 {vr(gad)}, {vr(t0)}, 4, {vr(gad)}')
    a(f's_lshr_b32 {sr(T[2])}, {sr(S_R0)}, 4')
    a(f's_mul_i32 {sr(T[2])}, {sr(T[2])}, 49152')
    a(f's_add_u32 {sr(T[2])}, {sr(T[2])}, {WS_GF}')
    a(f's_mul_i32 {sr(T[3])}, {sr(S_CI)}, 12')
    a(f's_mul_i32 {sr(T[4])}, {sr(S_LW)}, 3')
    a(f's_add_u32 {sr(T[3])}, {sr(T[3])}, {sr(T[4])}')
    def st_gf(sc):
        k = 0
        for jn in range(3):
            a(f's_add_u32 {sr(T[4])}, {sr(T[3])}, {jn}')
            a(f's_lshr_b32 {sr(T[5])}, {sr(T[4])}, 1')
            a(f's_lshl_b32 {sr(T[5])}, {sr(T[5])}, 10')
            a(f's_and_b32 {sr(T[4])}, {sr(T[4])}, 1')
            a(f's_lshl_b32 {sr(T[4])}, {sr(T[4])}, 3')
            a(f's_add_u32 {sr(T[5])}, {sr(T[5])}, {sr(T[4])}')
            a(f's_add_u32 {sr(T[5])}, {sr(T[5])}, {sr(T[2])}')
            for mt in mts:
                a(f's_add_u32 {sr(T[4])}, {sr(T[5])}, {mt * 49152}')
                a(f'buffer_store_dwordx2 {vr(pk[k], 2)}, {vr(gad)}, {sr(S_WS, 4)}, {sr(T[4])} offen{sc}')
                k += 1
    dual(a, o, st_gf)
    stamp(a, o, 5)
    a('s_waitcnt vmcnt(0)')
    stamp(a, o, 6)
    flagw_off(a, T[0], FL4, nw=8)
    set_flag(a, o, T[0], mode='dual', v1=t0, v2=t1)

def loader345(a, o):
    a.comment('---- loader S2(W4 prefetch)/S3/S4/S5 ----')
    o.cur = 6
    V = RegAlloc(W4R, 1)
    vl = V.alloc(); t0 = V.alloc(); t1 = V.alloc()
    wreg = W4R
    a(f'v_lshlrev_b32 {vr(vl)}, 4, v0')
    S5B = 68
    a(f's_mul_i32 {sr(S5B)}, {sr(S_CI)}, {48 * 5120}')
    a(f's_lshl_b32 s69, {sr(S_LW)}, 10')
    a(f's_add_u32 {sr(S5B)}, {sr(S5B)}, s69')
    a(f's_add_u32 {sr(S5B)}, {sr(S5B)}, {WS_WT5}')
    q = VQ(a)
    def issue5(i):
        c = W5SEQ[i]; slot = (i % NSLOT) * S5_CH
        for n in range(5):
            a(f's_add_u32 m0, s69, {slot + n * 4096}')
            a(f's_add_u32 {sr(T[2])}, {sr(S5B)}, {c * S5_CH + n * 4096}')
            a(f'buffer_load_dwordx4 {vr(vl)}, {sr(S_WS, 4)}, {sr(T[2])} offen sc1 lds')
        q.add(('d', i), 5)
    a(f'v_and_b32 {vr(t0)}, 15, v0')
    a(f'v_lshlrev_b32 {vr(t0)}, 2, {vr(t0)}')
    a(f'v_add_u32 {vr(t0)}, {WS_FL + FLR + 0x100}, {vr(t0)}')
    poll(a, [t0], [t1])
    cs = V.alloc(12, 4); ones = V.alloc(4, 4)
    cs_early(a, wreg, KL, cs, ones)
    V.release(ones, 4)
    a('s_barrier')
    issue5(0); issue5(1); issue5(2)
    a('s_barrier')
    a('s_barrier')
    s4(a, o, V, True, wreg, cs, post_p1=None)
    q.q = []
    ha, hb = wreg + 8, wreg + 9
    def full(i):
        q.wait(('d', i))
        lds_inc(a, HS + 4 * i, ha, hb)
    issue5(4); issue5(5); issue5(6)
    full(4); full(5)
    lds_wait(a, HS + 64 + 0, ha, hb)
    issue5(7); issue5(8)
    if o.wbl2 >= 0:
        pass
    full(6)
    lds_wait(a, HS + 64 + 4, ha, hb)
    issue5(9); issue5(10)
    full(7); full(8)
    lds_wait(a, HS + 64 + 8, ha, hb)
    issue5(11)
    full(9); full(10); full(11)
    if o.wbl2 >= 0:
        lab = a.newlabel('L_nowb')
        a(f's_cmp_lg_u32 {sr(S_MEM)}, 0')
        a(f's_cbranch_scc1 {lab}')
        a(f's_cmp_lg_u32 {sr(S_WAVE)}, 7')
        a(f's_cbranch_scc1 {lab}')
        a('buffer_wbl2 sc1')
        a.label(lab)
    a('s_barrier')
    a('s_barrier')

def s3_compute(a, o):
    o.cur = 3
    stamp(a, o, 1)
    V = RegAlloc(VH, 1)
    t0, t1, t2, t3 = [V.alloc() for _ in range(4)]
    al = V.alloc(); al2 = V.alloc(); al3 = V.alloc()
    xr = V.alloc(10, 2)
    a(f'v_and_b32 {vr(t0)}, 15, v0')
    a(f'v_lshrrev_b32 {vr(t1)}, 4, v0')
    a(f'v_mul_u32_u24 {vr(t2)}, 0x500, {vr(t0)}')
    a(f'v_lshl_add_u32 {vr(t2)}, {vr(t1)}, 3, {vr(t2)}')
    a(f's_lshl_b32 {sr(T[2])}, {sr(S_WAVE)}, 4')
    a(f's_add_u32 {sr(T[2])}, {sr(T[2])}, {sr(S_R0)}')
    a(f's_mul_i32 {sr(T[2])}, {sr(T[2])}, 1280')
    a(f's_mul_i32 {sr(T[3])}, {sr(S_CI)}, 160')
    a(f's_add_u32 {sr(S_OUTOFF)}, {sr(T[2])}, {sr(T[3])}')
    for j in range(5):
        a(f'buffer_load_dwordx2 {vr(xr + 2 * j, 2)}, {vr(t2)}, {sr(S_X, 4)}, {sr(S_OUTOFF)} offen offset:{j * 32}')
    NR = 8
    af = V.alloc(4 * NR, 4)
    a(f'v_add_u32 {vr(al2)}, 0x10000, {vr(al)}')
    a(f'v_add_u32 {vr(al3)}, 0x20000, {vr(al)}')
    a(f's_lshr_b32 {sr(S_TT)}, {sr(S_R0)}, 4')
    a(f's_add_u32 {sr(S_TT)}, {sr(S_TT)}, {sr(S_WAVE)}')
    a(f's_and_b32 {sr(T[2])}, {sr(S_TT)}, 0xfffffffe')
    a(f's_mul_i32 {sr(T[2])}, {sr(T[2])}, 20480')
    a(f's_and_b32 s68, {sr(S_WAVE)}, 1')
    a(f's_mul_i32 {sr(T[3])}, s68, 10240')
    a(f's_add_u32 {sr(T[2])}, {sr(T[2])}, {sr(T[3])}')
    a(f's_add_u32 {sr(T[2])}, {sr(T[2])}, {WS_OF}')
    a(f's_add_u32 s69, {sr(T[2])}, 20480')
    vla = V.alloc()
    a(f'v_lshlrev_b32 {vr(vla)}, 4, v0')
    tr_base(a, al, t0, t1)
    a(f's_mul_i32 {sr(T[3])}, s68, 51200')
    a(f'v_add_u32 {vr(al)}, {sr(T[3])}, {vr(al)}')
    a(f'v_add_u32 {vr(al2)}, 0x10000, {vr(al)}')
    a(f'v_add_u32 {vr(al3)}, 0x20000, {vr(al)}')
    a(f's_lshr_b32 {sr(T[1])}, {sr(S_R0)}, 7')
    a(f's_and_b32 {sr(T[1])}, {sr(T[1])}, 1')
    a(f's_lshl_b32 {sr(T[1])}, {sr(T[1])}, 4')
    a(f's_lshr_b32 {sr(T[3])}, {sr(S_TT)}, 1')
    a(f's_and_b32 {sr(T[3])}, {sr(T[3])}, 3')
    a(f'v_and_b32 {vr(t0)}, 15, v0')
    a(f's_lshl_b32 {sr(T[6])}, {sr(S_TEAM)}, 5')
    a(f's_add_u32 {sr(T[6])}, {sr(T[6])}, {sr(T[1])}')
    a(f's_lshl_b32 {sr(T[6])}, {sr(T[6])}, 5')
    a(f's_lshl_b32 {sr(T[7])}, {sr(T[3])}, 2')
    a(f's_add_u32 {sr(T[6])}, {sr(T[6])}, {sr(T[7])}')
    a(f's_add_u32 {sr(T[6])}, {sr(T[6])}, {WS_FL + FL2}')
    a(f'v_lshl_add_u32 {vr(t0)}, {vr(t0)}, 5, {sr(T[6])}')
    a(f'v_bfe_u32 {vr(t1)}, v0, 4, 1')
    a(f'v_lshl_add_u32 {vr(t0)}, {vr(t1)}, 4, {vr(t0)}')
    poll(a, [t0], [t1])
    stamp(a, o, 2)
    q = VQ(a)
    def aload(u):
        s, m = u // 2, u % 2
        base = T[2] if m == 0 else 69
        a(f's_add_u32 {sr(T[4])}, {sr(base)}, {(s // 4) * 4096}')
        a(f'buffer_load_dwordx4 {vr(af + 4 * (u % NR), 4)}, {vr(vla)}, {sr(S_WS, 4)}, {sr(T[4])} offen offset:{(s % 4) * 1024} sc1')
        q.add(('a', u))
    NPRE = 6
    for u in range(NPRE): aload(u)
    a('s_barrier')
    acc = V.alloc(40, 4)
    wf = V.alloc(20, 4)
    als = [al, al2, al3]
    def wread(s, j):
        L = []
        for h in range(2):
            off = W3_BASE + s * 5120 + h * 2560 + j * 32
            L.append(f'ds_read_b64_tr_b16 {vr(wf + 4 * j + 2 * h, 2)}, {vr(als[off // 65536])} offset:{off % 65536}')
        return L
    for j in range(5):
        for x in wread(0, j): a(x)
    stamp(a, o, 3)
    for s in range(10):
        for u in (2 * s + NPRE, 2 * s + NPRE + 1):
            if u < 20: aload(u)
        q.wait(('a', 2 * s + 1))
        last = s == 9
        for j in range(5):
            a(f's_waitcnt lgkmcnt({8 if not last else 8 - 2 * j})')
            for m in range(2):
                d = vr(acc + (m * 5 + j) * 4, 4)
                a(f'v_mfma_f32_16x16x32_bf16 {d}, {vr(wf + 4 * j, 4)}, {vr(af + 4 * ((2 * s + m) % NR), 4)}, {"0" if s == 0 else d}')
            if not last:
                for x in wread(s + 1, j): a(x)
    a('s_barrier')
    stamp(a, o, 4)
    V.release(af, 4 * NR)
    xa = V.alloc()
    a(f'v_lshlrev_b32 {vr(xa)}, 4, v0')
    a(f's_mul_i32 {sr(T[3])}, {sr(S_WAVE)}, 5120')
    a(f's_add_u32 {sr(T[3])}, {sr(T[3])}, {XCH3}')
    a(f'v_add_u32 {vr(t0)}, {sr(T[3])}, {vr(xa)}')
    a(f's_xor_b32 {sr(T[3])}, {sr(S_WAVE)}, 1')
    a(f's_mul_i32 {sr(T[3])}, {sr(T[3])}, 5120')
    a(f's_add_u32 {sr(T[3])}, {sr(T[3])}, {XCH3}')
    a(f'v_add_u32 {vr(t1)}, {sr(T[3])}, {vr(xa)}')
    pair_reduce(a, acc, t0, t1, wf, 's68')
    hacc = acc
    pk = V.alloc(10, 2)
    for j in range(5):
        for hf in range(2):
            xs = xr + 2 * j + hf
            i0 = hacc + 4 * j + 2 * hf
            a(f'v_lshlrev_b32 {vr(t0)}, 16, {vr(xs)}')
            a(f'v_and_b32 {vr(t1)}, 0xffff0000, {vr(xs)}')
            a(f'v_add_f32 {vr(i0)}, {vr(i0)}, {vr(t0)}')
            a(f'v_add_f32 {vr(i0 + 1)}, {vr(i0 + 1)}, {vr(t1)}')
            a(f'v_cvt_pk_bf16_f32 {vr(pk + 2 * j + hf)}, {vr(i0)}, {vr(i0 + 1)}')
    a(f'v_and_b32 {vr(t0)}, 15, v0')
    a(f'v_lshrrev_b32 {vr(t1)}, 4, v0')
    a(f'v_lshlrev_b32 {vr(t2)}, 8, {vr(t1)}')
    a(f'v_lshl_add_u32 {vr(t2)}, {vr(t0)}, 4, {vr(t2)}')
    a(f's_mul_i32 {sr(T[2])}, {sr(S_TT)}, 20480')
    a(f's_add_u32 {sr(T[2])}, {sr(T[2])}, {WS_HF}')
    a(f's_mul_i32 {sr(T[3])}, {sr(S_CI)}, 5')
    def st_hf(sc):
        for j in range(5):
            a(f's_add_u32 {sr(T[4])}, {sr(T[3])}, {j}')
            a(f's_lshr_b32 {sr(T[5])}, {sr(T[4])}, 1')
            a(f's_lshl_b32 {sr(T[5])}, {sr(T[5])}, 10')
            a(f's_and_b32 {sr(T[4])}, {sr(T[4])}, 1')
            a(f's_lshl_b32 {sr(T[4])}, {sr(T[4])}, 3')
            a(f's_add_u32 {sr(T[5])}, {sr(T[5])}, {sr(T[4])}')
            a(f's_add_u32 {sr(T[5])}, {sr(T[5])}, {sr(T[2])}')
            a(f'buffer_store_dwordx2 {vr(pk + 2 * j, 2)}, {vr(t2)}, {sr(S_WS, 4)}, {sr(T[5])} offen{sc}')
    dual(a, o, st_hf)
    for k in range(10):
        a(f'v_lshlrev_b32 {vr(VH + 2 * k)}, 16, {vr(pk + k)}')
        a(f'v_and_b32 {vr(VH + 2 * k + 1)}, 0xffff0000, {vr(pk + k)}')
    sm = V.alloc(); m2 = V.alloc(); sm2 = V.alloc()
    a(f'v_add_f32 {vr(sm)}, {vr(VH)}, {vr(VH + 1)}')
    a(f'v_add_f32 {vr(sm2)}, {vr(VH + 2)}, {vr(VH + 3)}')
    for k in range(4, 20, 2):
        a(f'v_add_f32 {vr(sm)}, {vr(sm)}, {vr(VH + k)}')
        a(f'v_add_f32 {vr(sm2)}, {vr(sm2)}, {vr(VH + k + 1)}')
    a(f'v_add_f32 {vr(sm)}, {vr(sm)}, {vr(sm2)}')
    xg_reduce(a, sm, t3, 'v_add_f32')
    a(f'v_mul_f32 {vr(sm)}, {f2u(1.0 / 80.0):#x}, {vr(sm)}')
    for k in range(20):
        tt = t3 if k % 2 == 0 else t1
        mm = m2 if k % 2 == 0 else sm2
        a(f'v_sub_f32 {vr(tt)}, {vr(VH + k)}, {vr(sm)}')
        if k < 2: a(f'v_mul_f32 {vr(mm)}, {vr(tt)}, {vr(tt)}')
        else: a(f'v_fmac_f32 {vr(mm)}, {vr(tt)}, {vr(tt)}')
    a(f'v_add_f32 {vr(m2)}, {vr(m2)}, {vr(sm2)}')
    xg_reduce(a, m2, t3, 'v_add_f32')
    st = V.alloc(2, 2)
    a(f'v_mov_b32 {vr(st)}, {vr(sm)}')
    a(f'v_mov_b32 {vr(st + 1)}, {vr(m2)}')
    a(f'v_lshrrev_b32 {vr(t1)}, 4, v0')
    a(f'v_lshlrev_b32 {vr(t2)}, 6, {vr(t0)}')
    a(f'v_mov_b32 {vr(t3)}, {OOB:#x}')
    a(f'v_cmp_eq_u32 vcc, 0, {vr(t1)}')
    a(f'v_cndmask_b32 {vr(t2)}, {vr(t3)}, {vr(t2)}, vcc')
    a(f's_lshl_b32 {sr(T[2])}, {sr(S_TT)}, 10')
    a(f's_lshl_b32 {sr(T[3])}, {sr(S_CI)}, 3')
    a(f's_add_u32 {sr(T[2])}, {sr(T[2])}, {sr(T[3])}')
    a(f's_add_u32 {sr(T[2])}, {sr(T[2])}, {WS_ST2}')
    dual(a, o, lambda sc: a(f'buffer_store_dwordx2 {vr(st, 2)}, {vr(t2)}, {sr(S_WS, 4)}, {sr(T[2])} offen{sc}'))
    a('s_waitcnt vmcnt(0)')
    stamp(a, o, 5)
    flagw_off(a, T[0], FL3)
    set_flag(a, o, T[0], mode='dual', v1=t0, v2=t1)

def pair_reduce(a, acc, vwr, vrd, tmp, s_kh, extra_barriers=0):
    l1 = a.newlabel('L_kh1'); l2 = a.newlabel('L_khj')
    a(f's_cmp_eq_u32 {s_kh}, 0')
    a(f's_cbranch_scc0 {l1}')
    for j in range(5): a(f'ds_write_b128 {vr(vwr)}, {vr(acc + (5 + j) * 4, 4)} offset:{j * 1024}')
    a(f's_branch {l2}')
    a.label(l1)
    for j in range(5): a(f'ds_write_b128 {vr(vwr)}, {vr(acc + j * 4, 4)} offset:{j * 1024}')
    a('s_waitcnt lgkmcnt(0)')
    for r in range(20): a(f'v_mov_b32 {vr(acc + r)}, {vr(acc + 20 + r)}')
    a.label(l2)
    a('s_waitcnt lgkmcnt(0)')
    a('s_barrier')
    for j in range(5): a(f'ds_read_b128 {vr(tmp + 4 * j, 4)}, {vr(vrd)} offset:{j * 1024}')
    a('s_waitcnt lgkmcnt(0)')
    for r in range(0, 20, 2):
        a(f'v_pk_add_f32 {vr(acc + r, 2)}, {vr(acc + r, 2)}, {vr(tmp + r, 2)}')

def s5_compute(a, o, Vc=None):
    o.cur = 5
    V = RegAlloc(256, 1)
    for k in range(VH, VH + 20): V.free[k] = False
    NR = 16
    af = V.alloc(4 * NR, 4)
    acc = V.alloc(40, 4)
    wf = [V.alloc(20, 4) for _ in range(2)]
    al = [V.alloc() for _ in range(3)]
    b2r = V.alloc(10, 2)
    vla = V.alloc()
    t0, t1, t2 = [V.alloc() for _ in range(3)]
    a(f'v_lshlrev_b32 {vr(vla)}, 4, v0')
    a(f's_and_b32 s68, {sr(S_WAVE)}, 1')
    trb = V.alloc()
    tr_base(a, trb, t0, t1)
    a(f's_and_b32 {sr(T[2])}, {sr(S_TT)}, 0xfffffffe')
    a(f's_mul_i32 {sr(T[2])}, {sr(T[2])}, 49152')
    a(f's_mul_i32 {sr(T[3])}, s68, 24576')
    a(f's_add_u32 {sr(T[2])}, {sr(T[2])}, {sr(T[3])}')
    a(f's_add_u32 {sr(T[2])}, {sr(T[2])}, {WS_GF}')
    a(f's_add_u32 s69, {sr(T[2])}, 49152')
    a(f'v_lshrrev_b32 {vr(t1)}, 4, v0')
    a(f'v_lshlrev_b32 {vr(t2)}, 3, {vr(t1)}')
    a(f's_mul_i32 {sr(T[3])}, {sr(S_CI)}, 160')
    for j in range(5):
        a(f'buffer_load_dwordx2 {vr(b2r + 2 * j, 2)}, {vr(t2)}, {sr(S_B2, 4)}, {sr(T[3])} offen offset:{j * 32}')
    a(f's_and_b32 {sr(T[1])}, {sr(S_MEM)}, 24')
    poll_w(a, FL4, T[1], 7, None, t0, t1, nw=8)
    stamp(a, o, 9)
    q = VQ(a)
    def aload(u):
        s, m = u // 2, u % 2
        base = T[2] if m == 0 else 69
        a(f's_add_u32 {sr(T[4])}, {sr(base)}, {(s // 4) * 4096}')
        a(f'buffer_load_dwordx4 {vr(af + 4 * (u % NR), 4)}, {vr(vla)}, {sr(S_WS, 4)}, {sr(T[4])} offen offset:{(s % 4) * 1024} sc1')
        q.add(('a', u))
    NPRE = o.npre5
    for u in range(NPRE): aload(u)
    def set_pair(p):
        a('s_cmp_eq_u32 s68, 0')
        scsel(a, sr(T[3]), ((2 * p) % NSLOT) * S5_CH, ((2 * p + 1) % NSLOT) * S5_CH)
        a(f'v_add_u32 {vr(al[p % 2])}, {sr(T[3])}, {vr(trb)}')
    def wreads(s):
        p = s // 4
        L = []
        for j in range(5):
            for h in range(2):
                off = (s % 4) * 5120 + h * 2560 + j * 32
                L.append(f'ds_read_b64_tr_b16 {vr(wf[s % 2] + 4 * j + 2 * h, 2)}, {vr(al[p % 2])} offset:{off}')
        return L
    set_pair(0)
    stamp(a, o, 1)
    for x in wreads(0): a(x)
    for s in range(24):
        q.wait(('a', 2 * s + 1), 'lgkmcnt(0)')
        R = []
        if s + 1 < 24:
            if (s + 1) % 4 == 0:
                pd = s // 4; pn = pd + 1
                if pd <= 2: lds_inc(a, HS + 64 + 4 * pd, t0, t1)
                set_pair(pn)
                if pn >= 2:
                    a(f's_lshl_b32 {sr(T[3])}, s68, 2')
                    a(f's_add_u32 {sr(T[3])}, {sr(T[3])}, {HS + 8 * pn}')
                    lds_wait(a, None, t0, t1, sreg_word=T[3])
                if pn in (1, 2, 3, 4, 5): stamp(a, o, 1 + pn)
            R = wreads(s + 1)
        M = []
        for j in range(5):
            for m in range(2):
                d = vr(acc + (m * 5 + j) * 4, 4)
                M.append(f'v_mfma_f32_16x16x32_bf16 {d}, {vr(wf[s % 2] + 4 * j, 4)}, {vr(af + 4 * ((2 * s + m) % NR), 4)}, {"0" if s == 0 else d}')
        interleave(a, M, R)
        for u in (2 * s + NPRE, 2 * s + NPRE + 1):
            if u < 48: aload(u)
    stamp(a, o, 7)
    a('s_barrier')
    a(f's_mul_i32 {sr(T[3])}, {sr(S_WAVE)}, 5120')
    a(f'v_add_u32 {vr(t0)}, {sr(T[3])}, {vr(vla)}')
    a(f's_xor_b32 {sr(T[3])}, {sr(S_WAVE)}, 1')
    a(f's_mul_i32 {sr(T[3])}, {sr(T[3])}, 5120')
    a(f'v_add_u32 {vr(t1)}, {sr(T[3])}, {vr(vla)}')
    q.drain()
    pair_reduce(a, acc, t0, t1, wf[0], 's68')
    pk = V.alloc(10, 2)
    for j in range(5):
        for hf in range(2):
            bs = b2r + 2 * j + hf
            i0 = 4 * j + 2 * hf
            a(f'v_lshlrev_b32 {vr(t0)}, 16, {vr(bs)}')
            a(f'v_and_b32 {vr(t1)}, 0xffff0000, {vr(bs)}')
            a(f'v_add_f32 {vr(t0)}, {vr(t0)}, {vr(VH + i0)}')
            a(f'v_add_f32 {vr(t1)}, {vr(t1)}, {vr(VH + i0 + 1)}')
            a(f'v_add_f32 {vr(acc + i0)}, {vr(acc + i0)}, {vr(t0)}')
            a(f'v_add_f32 {vr(acc + i0 + 1)}, {vr(acc + i0 + 1)}, {vr(t1)}')
            a(f'v_cvt_pk_bf16_f32 {vr(pk + 2 * j + hf)}, {vr(acc + i0)}, {vr(acc + i0 + 1)}')
    a(f'v_and_b32 {vr(t0)}, 15, v0')
    a(f'v_lshrrev_b32 {vr(t1)}, 4, v0')
    a(f'v_mul_u32_u24 {vr(t2)}, 0x500, {vr(t0)}')
    a(f'v_lshl_add_u32 {vr(t2)}, {vr(t1)}, 3, {vr(t2)}')
    for j in range(5):
        a(f'buffer_store_dwordx2 {vr(pk + 2 * j, 2)}, {vr(t2)}, {sr(S_OUT, 4)}, {sr(S_OUTOFF)} offen offset:{j * 32}')
    stamp(a, o, 8)

def w5_dma(a, V, seqs):
    from s2 import nat_addr
    vb = V.alloc(8)
    va = nat_addr(a, vb, 1280, lambda *x: (16, 4, 1))
    a(f's_mul_i32 s76, {sr(S_CI)}, 160')
    a(f's_mul_i32 s77, {sr(S_LW)}, {32 * 1280}')
    a('s_add_u32 s76, s76, s77')
    a(f's_mul_i32 s77, {sr(S_LW)}, 5120')
    for i in seqs:
        a(f's_add_u32 s78, s76, {W5SEQ[i] * 128 * 1280}')
        for n in range(5):
            a(f's_add_u32 m0, s77, {(i % NSLOT) * S5_CH + n * 1024}')
            a('s_nop 0')
            a(f'buffer_load_dwordx4 {vr(va[n])}, {sr(S_W2, 4)}, s78 offen lds')
    V.release(vb, 8)

def rest(a, o):
    import s2 as S2
    S2.s2_roles(a)
    S2.s2_all(a, o)
    a(f's_cmp_ge_u32 {sr(S_WAVE)}, 4')
    a('s_cbranch_scc1 L_rest_loader')
    s3_compute(a, o)
    V = RegAlloc(VH, 1)
    o.wreg_c = W4R
    def c_post_p1():
        w5_dma(a, V, (3,))
    cs = V.alloc(12, 4); ones = V.alloc(4, 4)
    cs_early(a, o.wreg_c, 20 - KL, cs, ones)
    V.release(ones, 4)
    s4(a, o, V, False, o.wreg_c, cs, post_p1=c_post_p1)
    s5_compute(a, o, V)
    a('s_branch L_rest_done')
    a.label('L_rest_loader')
    o.cur = -1
    loader345(a, o)
    a.label('L_rest_done')
```
